```python
import torch

def _softmax(x, axis=-1):
    return torch.softmax(x, dim=axis)
def _gelu(x):
    return torch.nn.functional.gelu(x, approximate="tanh")
def _silu(x):
    return torch.nn.functional.silu(x)
def _sigmoid(x):
    return torch.sigmoid(x)
def _layernorm(x, axis=-1, eps=1e-5):
    m = x.mean(dim=axis, keepdim=True)
    v = x.var(dim=axis, keepdim=True, unbiased=False)
    return (x - m) / torch.sqrt(v + eps)
def _scatter_add(tgt, idx, src, axis=0):
    return tgt.clone().index_add_(axis, idx, src)
def _segment_sum(src, seg, n):
    out = torch.zeros((n,) + src.shape[1:], dtype=src.dtype)
    return out.index_add_(0, seg, src)
def _pad(x, pw):
    flat = tuple(v for pair in reversed(pw) for v in pair)
    return torch.nn.functional.pad(x, flat)

kernel_name = 'concat_heads__ssm_conv_s4d__ssm_conv_s5__prompt'

def setup_inputs():

    _w = (lambda a: (lambda t: t.to(torch.bfloat16) if t.is_floating_point() else t)(torch.as_tensor(a)))
    def _A_setup():
        Bsz, L, D, N = 1, 2048, 448, 256
        return {
            "u": _w((lambda *s: torch.randn(*s, dtype=torch.bfloat16) * 0.05)(Bsz, L, D)),
            "log_A_real": _w((lambda *s: torch.randn(*s, dtype=torch.bfloat16) * 3.2)(D, N) * 0.5),
            "A_imag": _w((lambda *s: torch.randn(*s, dtype=torch.bfloat16) * 0.05)(D, N) * 3.14),
            "C_real": _w((lambda *s: torch.randn(*s, dtype=torch.bfloat16) * 0.1)(D, N) / N ** 0.5),
            "C_imag": _w((lambda *s: torch.randn(*s, dtype=torch.bfloat16) * 0.1)(D, N) / N ** 0.5),
            "log_dt": _w((lambda *s: torch.randn(*s, dtype=torch.bfloat16) * 0.05)(D) * 0.5 - 4.0),
            "D_skip": _w((lambda *s: torch.randn(*s, dtype=torch.bfloat16) * 0.05)(D)),
        }
    _A_in = _A_setup()

    def _B_setup():
        B, S, D = 1, 2048, 448
        P = D
        Lambda_re = -0.5 * (lambda _x: torch.exp(torch.as_tensor(_x)))((lambda *s: torch.randn(*s, dtype=torch.bfloat16) * 0.2)(P))
        Lambda_im = (lambda *s: torch.randn(*s, dtype=torch.bfloat16) * 0.4)(P) * 1.0
        B_re = (lambda *s: torch.randn(*s, dtype=torch.bfloat16) * 0.2)(P, D) * (D ** -0.5)
        B_im = (lambda *s: torch.randn(*s, dtype=torch.bfloat16) * 0.2)(P, D) * (D ** -0.5)
        C_re = (lambda *s: torch.randn(*s, dtype=torch.bfloat16) * 0.2)(D, P) * (P ** -0.5)
        C_im = (lambda *s: torch.randn(*s, dtype=torch.bfloat16) * 0.2)(D, P) * (P ** -0.5)
        log_dt = (lambda *s: torch.randn(*s, dtype=torch.bfloat16) * 0.2)(P) * 0.3 - 2.0
        Dskip = (lambda *s: torch.randn(*s, dtype=torch.bfloat16) * 0.05)(D)
        return {
            "x": _w((lambda *s: torch.randn(*s, dtype=torch.bfloat16) * 0.05)(B, S, D)),
            "Lambda_re": _w(Lambda_re),
            "Lambda_im": _w(Lambda_im),
            "B_re": _w(B_re),
            "B_im": _w(B_im),
            "C_re": _w(C_re),
            "C_im": _w(C_im),
            "log_dt": _w(log_dt),
            "Dskip": _w(Dskip),
        }
    _B_in = _B_setup()

    return {
        "A_u": _A_in["u"],
        "A_log_A_real": _A_in["log_A_real"],
        "A_A_imag": _A_in["A_imag"],
        "A_C_real": _A_in["C_real"],
        "A_C_imag": _A_in["C_imag"],
        "A_log_dt": _A_in["log_dt"],
        "A_D_skip": _A_in["D_skip"],
        "B_x": _B_in["x"],
        "B_Lambda_re": _B_in["Lambda_re"],
        "B_Lambda_im": _B_in["Lambda_im"],
        "B_B_re": _B_in["B_re"],
        "B_B_im": _B_in["B_im"],
        "B_C_re": _B_in["C_re"],
        "B_C_im": _B_in["C_im"],
        "B_log_dt": _B_in["log_dt"],
        "B_Dskip": _B_in["Dskip"],
    }

def reference(A_u, A_log_A_real, A_A_imag, A_C_real, A_C_imag, A_log_dt, A_D_skip, B_x, B_Lambda_re, B_Lambda_im, B_B_re, B_B_im, B_C_re, B_C_im, B_log_dt, B_Dskip):
    def _A_ref(u, log_A_real, A_imag, C_real, C_imag, log_dt, D_skip):
        L = u.shape[1]
        dt = torch.exp(log_dt)
        A = -torch.exp(log_A_real) + 1j * A_imag
        C = (C_real + 1j * C_imag) * dt[:, None]
        pos = (lambda x, dt: x.to(dt))(torch.arange(L), log_dt.dtype)
        P = torch.exp((A * dt[:, None])[:, :, None] * pos[None, None, :])
        K = 2.0 * torch.einsum("dn,dnl->dl", C, P).real
        L2 = 2 * L
        u_t = (lambda x, *d: x.permute(*d))(u, 0, 2, 1)
        Kf = (lambda x, *a, **k: torch.fft.rfft(x.float(), *a, **k))(K, L2)
        Uf = (lambda x, *a, **k: torch.fft.rfft(x.float(), *a, **k))(u_t, L2)
        y = (lambda x, *a, **k: torch.fft.irfft(x, *a, **k).to(torch.bfloat16))(Uf * Kf[None, :, :], L2)[:, :, :L]
        y = (lambda x, *d: x.permute(*d))(y, 0, 2, 1)
        return y + u * D_skip[None, None, :]

    def _B_ref(x, Lambda_re, Lambda_im, B_re, B_im, C_re, C_im, log_dt, Dskip):
        Bsz, L, H = x.shape
        Lam = Lambda_re + 1j * Lambda_im
        Bmat = B_re + 1j * B_im
        Cmat = C_re + 1j * C_im
        dt = torch.exp(log_dt)
        Lam_bar = torch.exp(dt * Lam)
        B_bar = ((Lam_bar - 1.0) / Lam)[:, None] * Bmat
        Bu = torch.einsum("bld,pd->blp", x + 0j, B_bar)
        h = torch.zeros_like(Bu[:, 0, :])
        hs = []
        for t in range(L):
            h = Lam_bar[None, :] * h + Bu[:, t, :]
            hs.append(h)
        hseq = torch.stack(hs, 1)
        y = 2.0 * torch.einsum("blp,dp->bld", hseq, Cmat).real + x * Dskip[None, None, :]
        return y

    a = _A_ref(A_u, A_log_A_real, A_A_imag, A_C_real, A_C_imag, A_log_dt, A_D_skip)
    b = _B_ref(B_x, B_Lambda_re, B_Lambda_im, B_B_re, B_B_im, B_C_re, B_C_im, B_log_dt, B_Dskip)
    return torch.concatenate([a, b], axis=-1)
```

```python
import re

TRANS = ("v_exp_f32", "v_log_f32", "v_rcp_f32", "v_rsq_f32", "v_sqrt_f32", "v_sin_f32", "v_cos_f32")

_reg_re = re.compile(r"(?<![\w.])([vsa])(\d+)(?![\w])|(?<![\w.])([vsa])\[(\d+):(\d+)\]|(?<![\w.])(vcc|exec|m0|scc)(?![\w])")


def regs_of(op):
    out = []
    for m in _reg_re.finditer(op):
        if m.group(1):
            out.append((m.group(1), int(m.group(2))))
        elif m.group(3):
            for i in range(int(m.group(4)), int(m.group(5)) + 1):
                out.append((m.group(3), i))
        else:
            n = m.group(6)
            if n == "vcc":
                out += [("s", 106), ("s", 107)]
            elif n == "exec":
                out += [("s", 126), ("s", 127)]
            elif n == "m0":
                out.append(("s", 124))
    return out


def split_ops(rest):
    ops, depth, cur = [], 0, ""
    for ch in rest:
        if ch == "[":
            depth += 1
        if ch == "]":
            depth -= 1
        if ch == "," and depth == 0:
            ops.append(cur.strip())
            cur = ""
        else:
            cur += ch
    if cur.strip():
        ops.append(cur.strip())
    return ops


class Ins:
    def __init__(self, text):
        self.text = text
        t = text.split(";")[0].strip()
        self.label = None
        self.mn = None
        if t.endswith(":"):
            self.label = t[:-1]
            return
        if not t or t.startswith("."):
            return
        parts = t.split(None, 1)
        self.mn = mn = parts[0]
        rest = parts[1] if len(parts) > 1 else ""
        ops = split_ops(rest)
        self.mods = ""
        if ops:
            last = ops[-1]
            depth = 0
            for i, ch in enumerate(last):
                if ch == "[":
                    depth += 1
                if ch == "]":
                    depth -= 1
                if ch == " " and depth == 0:
                    self.mods = last[i:]
                    ops[-1] = last[:i]
                    break
        self.ops = ops
        self.valu = mn.startswith("v_") and not mn.startswith("v_mfma")
        self.mfma = mn.startswith("v_mfma")
        self.salu = mn.startswith("s_") and not mn.startswith(("s_load", "s_waitcnt", "s_nop", "s_barrier", "s_branch", "s_cbranch", "s_endpgm", "s_sleep", "s_setprio", "s_memtime", "s_memrealtime"))
        self.vmem = mn.startswith(("buffer_", "global_"))
        self.ds = mn.startswith("ds_")
        self.trans = mn.replace("_e32", "").replace("_e64", "") in TRANS
        self.dpp = "quad_perm" in self.mods or "row_" in self.mods or "wave_" in self.mods or "dpp" in mn
        self.branch = mn.startswith(("s_branch", "s_cbranch"))
        self.target = ops[0] if self.branch else None
        self.lds_dma = self.vmem and " lds" in (" " + self.mods + " ")
        w, r = [], []
        R = [regs_of(o) for o in ops]
        flat = lambda L: [x for l in L for x in l]
        if self.branch or mn in ("s_waitcnt", "s_nop", "s_barrier", "s_endpgm", "s_sleep", "s_setprio"):
            pass
        elif self.vmem:
            if "store" in mn or self.lds_dma or mn.startswith(("buffer_wbl2", "buffer_inv")):
                r = flat(R)
                if self.lds_dma:
                    r.append(("s", 124))
            elif "atomic" in mn:
                if "sc0" in self.mods:
                    w, r = R[0], flat(R[1:])
                else:
                    r = flat(R)
            else:
                w, r = R[0], flat(R[1:])
                if "d16" in mn:
                    r = r + R[0]
        elif self.ds:
            if mn.startswith(("ds_write", "ds_add")):
                r = flat(R)
            else:
                w, r = R[0], flat(R[1:])
                if "d16" in mn:
                    r = r + R[0]
        elif mn.startswith(("s_cmp", "s_bitcmp")):
            r = flat(R)
        elif mn.startswith("v_permlane") and "swap" in mn:
            w = flat(R)
            r = flat(R)
        elif mn.startswith(("v_add_co", "v_sub_co", "v_addc_co", "v_subb_co")):
            w, r = R[0] + R[1], flat(R[2:])
        else:
            w = R[0] if R else []
            r = flat(R[1:])
            if mn.startswith(("v_fmac", "v_pk_fmac", "s_addk", "s_mulk", "v_writelane")):
                r = r + w
            if mn.startswith("v_cndmask") and len(ops) == 3:
                r += [("s", 106), ("s", 107)]
            if "saveexec" in mn:
                w = w + [("s", 126), ("s", 127)]
        self.w, self.r = set(w), set(r)
        if self.mfma:
            self.srcA, self.srcB, self.srcC = set(R[1]), set(R[2]), set(R[3])
            self.dst = R[0]
            self.passes = 8 if "32x32x16" in mn else 4 if "16x16x32" in mn else None
            assert self.passes, mn
        self.wide_store = self.vmem and "store" in mn and ("x4" in mn or "x3" in mn)
        if self.wide_store:
            self.sdata = set(R[0]) if mn.startswith("buffer_") else set(R[1])
        self.slots = 1
        if mn == "s_nop":
            self.slots = int(ops[0]) + 1


def need(prod, cons):
    n = 0
    pw, cr, cw = prod.w if prod.mn else set(), cons.r, cons.w
    if prod.valu:
        sw = {x for x in pw if x[0] == "s"}
        vw = {x for x in pw if x[0] == "v"}
        if sw & cr:
            if cons.vmem:
                n = max(n, 5)
            if cons.valu:
                n = max(n, 4 if cons.mn.startswith(("v_readlane", "v_writelane")) else 2)
        if vw & cr:
            if cons.valu and cons.dpp:
                n = max(n, 2)
            if cons.mn.startswith(("v_readlane", "v_readfirstlane")):
                n = max(n, 1)
            if cons.mn.startswith("v_permlane"):
                n = max(n, 2)
            if cons.mfma:
                n = max(n, 2)
            if prod.trans and cons.valu and not cons.trans:
                n = max(n, 1)
            if prod.trans and (cons.vmem or cons.ds):
                n = max(n, 1)
        if ("s", 126) in pw and (cons.mfma or cons.valu):
            n = max(n, 5)
    if prod.salu and ("s", 124) in pw and cons.lds_dma:
        n = max(n, 1)
    if prod.mfma:
        d = set(prod.dst)
        big = prod.passes == 8
        if cons.mfma:
            if d & cons.srcC:
                if cons.dst == prod.dst and set(cons.dst) == cons.srcC and cons.passes == prod.passes:
                    pass
                elif cons.srcC == d and cons.passes == prod.passes:
                    pass
                else:
                    n = max(n, 10 if big else 6)
            if d & (cons.srcA | cons.srcB):
                n = max(n, 12 if big else 8)
            if (d & cons.w) and not (d & cons.srcC):
                n = max(n, 12 if big else 8)
        else:
            if d & (cr | cw):
                n = max(n, 12 if big else 8)
            if cons.valu and (prod.srcC & cw):
                n = max(n, 7 if big else 3)
    if prod.mn and getattr(prod, "wide_store", False) and (prod.sdata & cw):
        n = max(n, 2)
    return n


WINDOW = 24


def hazard_pass(lines):
    ins = [Ins(l) for l in lines]
    labels = {}
    out = []

    def required(hist, c):
        dist = 0
        worst = 0
        for p in reversed(hist):
            if p.mn is None:
                continue
            k = need(p, c) - dist
            worst = max(worst, k)
            dist += p.slots
            if dist > WINDOW:
                break
        return worst

    def nop(n):
        res = []
        while n > 0:
            k = min(n, 16)
            res.append(Ins("    s_nop %d" % (k - 1)))
            n -= k
        return res

    for c in ins:
        if c.mn is not None:
            hist = []
            for p in reversed(out):
                if p.mn in ("s_branch", "s_endpgm"):
                    break
                hist.append(p)
                if len(hist) > 3 * WINDOW:
                    break
            hist.reverse()
            k = required(hist, c)
            if k > 0:
                out += nop(k)
        out.append(c)
    changed = True
    it = 0
    while changed:
        changed = False
        it += 1
        assert it < 50
        labels = {x.label: i for i, x in enumerate(out) if x.label}
        for i, b in enumerate(out):
            if b.mn and b.branch:
                hist = []
                for p in reversed(out[:i + 1]):
                    if p is not b and p.mn in ("s_branch", "s_endpgm"):
                        break
                    hist.append(p)
                    if len(hist) > 3 * WINDOW:
                        break
                hist.reverse()
                j = labels[b.target]
                cnt = 0
                worst = 0
                h = list(hist)
                nb = len(h)
                while j < len(out) and cnt < WINDOW:
                    c = out[j]
                    if c.mn is not None:
                        dist = 0
                        for idx in range(len(h) - 1, -1, -1):
                            p = h[idx]
                            if p.mn is None:
                                continue
                            if idx < nb:
                                worst = max(worst, need(p, c) - dist)
                            dist += p.slots
                            if dist > WINDOW:
                                break
                        h.append(c)
                        cnt += c.slots
                        if c.mn in ("s_branch", "s_endpgm"):
                            break
                    j += 1
                if worst > 0:
                    out[i:i] = nop(worst)
                    changed = True
                    break
    return [x.text for x in out]


class Asm:
    def __init__(self):
        self.lines = []

    def __call__(self, s):
        for l in s.strip("\n").split("\n"):
            l = l.strip()
            if not l:
                continue
            if l.endswith(":") or l.startswith("."):
                self.lines.append(l)
            else:
                self.lines.append("    " + l)

    def label(self, n):
        self.lines.append(n + ":")

    def c(self, s):
        self.lines.append("    ; " + s)


def v(i, n=1):
    return "v%d" % i if n == 1 else "v[%d:%d]" % (i, i + n - 1)


def s(i, n=1):
    return "s%d" % i if n == 1 else "s[%d:%d]" % (i, i + n - 1)
```

```python
from asmlib import v, s, Ins


def schedule(ops, gap=2):
    ins = [Ins(o) for o in ops]
    n = len(ins)
    preds = [set() for _ in range(n)]
    raw = [set() for _ in range(n)]
    for i in range(n):
        for j in range(i):
            if ins[j].w & ins[i].r:
                preds[i].add(j)
                raw[i].add(j)
            if (ins[j].r & ins[i].w) or (ins[j].w & ins[i].w):
                preds[i].add(j)
    succ = [[] for _ in range(n)]
    for i in range(n):
        for j in preds[i]:
            succ[j].append(i)
    cp = [0] * n
    for i in range(n - 1, -1, -1):
        cp[i] = 1 + max([cp[k] + (1 if i in raw[k] else 0) for k in succ[i]], default=0)
    done = {}
    order = []
    left = set(range(n))
    while left:
        t = len(order)
        ready = [i for i in left if all(p in done for p in preds[i])]

        def key(i):
            g = 3 if any(ins[p].trans for p in raw[i]) else gap
            stall = max([done[p] + g - t for p in raw[i]], default=0)
            return (max(stall, 0), 0 if ins[i].ds else 1, -cp[i], i)
        i = min(ready, key=key)
        done[i] = t
        order.append(i)
        left.remove(i)
    return [ops[i] for i in order]


def gen_A(A, G):
    srd, stamp, stamps_init, stamps_flush = G["srd"], G["stamp"], G["stamps_init"], G["stamps_flush"]
    poll_epoch, spin_guard, STAMPS = G["poll_epoch"], G["spin_guard"], G["STAMPS"]
    WS_FLAGU, WS_FLAGA, WS_UT, WS_AT = G["WS_FLAGU"], G["WS_FLAGA"], G["WS_UT"], G["WS_AT"]
    LOG2E, INV2PI = G["LOG2E"], G["INV2PI"]
    SUT, SAT, SOUT = 40, 44, 48
    sA, sG, sTI, sW, sCH, sMH, sT0, sT1, sEP, sRD = 4, 5, 6, 9, 10, 11, 12, 13, 14, 15
    sLD, sDS, sP0, sP1 = 52, 53, 54, 55
    KSTR = 272
    WSC = 54 * KSTR
    UB, USTR = 58880, 7600
    GB, GSTR = 74112, 1408
    KB, KCH, KCP = 256, 16640, 4160
    RX = 33792
    OB = 50176
    vLANE, vZ, vEP = 1, 2, 3
    vIN = 4
    vGA = 8
    vKW, vKR = 19, 20
    vDT = 21
    vUL, vUW = 22, 23
    ACC = 32
    T = 64

    A.label("A_entry")
    A("s_load_dwordx16 s[16:31], s[0:1], 0")
    A("s_load_dwordx8 s[32:39], s[0:1], 120")
    A("s_sub_u32 s3, s2, 256")
    A("s_lshr_b32 s4, s3, 3")
    A("s_and_b32 s3, s3, 7")
    A("s_cmp_lt_u32 s4, 4")
    A("s_cbranch_scc1 L_exit")
    A("v_lshrrev_b32 v30, 6, v0")
    A(f"v_and_b32 {v(vLANE)}, 63, v0")
    A("v_and_b32 v29, 0xff, v0")
    if STAMPS or G["SPAN"]:
        A("s_memrealtime s[94:95]")
    stamps_init()
    A("s_mul_i32 s3, s3, 28")
    A(f"s_add_u32 s{sA}, s3, s4")
    A(f"s_sub_u32 s{sA}, s{sA}, 4")
    A(f"s_lshr_b32 s{sG}, s{sA}, 5")
    A(f"s_and_b32 s{sTI}, s{sA}, 31")
    A(f"v_readfirstlane_b32 s{sW}, v30")
    A(f"v_mov_b32 {v(vZ)}, 0")
    A(f"s_lshr_b32 s{sCH}, s{sW}, 1")
    A(f"s_and_b32 s{sMH}, s{sW}, 1")
    A(f"v_lshrrev_b32 v30, 5, {v(vLANE)}")
    A(f"v_and_b32 v31, 31, {v(vLANE)}")
    A(f"s_lshl_b32 s{sT0}, s{sTI}, 6")
    A(f"s_lshl_b32 s{sT1}, s{sW}, 4")
    A(f"s_add_u32 s{sT0}, s{sT0}, s{sT1}")
    A(f"s_add_u32 s{sT0}, s{sT0}, 4")
    A(f"s_mul_i32 s{sT0}, s{sT0}, 896")
    A(f"s_lshl_b32 s{sT1}, s{sG}, 7")
    A(f"s_add_u32 s{sT0}, s{sT0}, s{sT1}")
    A(f"v_mul_u32_u24 v24, {8*896}, v30")
    A(f"v_lshl_add_u32 v24, v31, 2, v24")
    A(f"v_add_u32 v24, s{sT0}, v24")
    A(f"s_lshl_b32 s{sT0}, s{sA}, 10")
    A(f"s_lshl_b32 s{sT1}, s{sW}, 8")
    A(f"s_add_u32 s{sT0}, s{sT0}, s{sT1}")
    A(f"v_lshl_add_u32 v25, {v(vLANE)}, 2, s{sT0}")
    A(f"s_lshl_b32 s{sT0}, s{sA}, 2")
    A("s_waitcnt lgkmcnt(0)")
    if STAMPS:
        A("v_writelane_b32 v0, s94, 0")
    for i in range(8):
        A(f"global_load_dword {v(T+i)}, v24, s[16:17] offset:{(i-4)*896}")
    for k in range(4):
        A(f"global_load_dword {v(vIN+k)}, v25, s[{18+2*k}:{19+2*k}]")
    A(f"s_load_dword s{sLD}, s[26:27], s{sT0}")
    A(f"s_load_dword s{sDS}, s[28:29], s{sT0}")
    A(f"s_lshl_b32 s{sT0}, s{sG}, 18")
    A(f"s_add_u32 s{sT1}, s{sT0}, {hex(WS_UT)}")
    srd(SUT, 38, 262144, off=f"s{sT1}")
    A(f"s_add_u32 s{sT1}, s{sT0}, {hex(WS_AT)}")
    srd(SAT, 38, 262144, off=f"s{sT1}")
    srd(SOUT, 34, 7340032)
    A(f"s_mov_b32 s{sP0}, 0x05040100")
    A(f"s_mov_b32 s{sP1}, 0x07060302")
    A("v_lshlrev_b32 v26, 3, v29")
    A("v_sub_u32 v26, 2047, v26")
    for e in range(0, 12, 2):
        A(f"v_subrev_u32 v72, {e}, v26")
        A(f"v_subrev_u32 v73, {e+1}, v26")
        A("v_cvt_f32_i32 v74, v72")
        A("v_cvt_f32_i32 v75, v73")
        A("v_cvt_pk_bf16_f32 v74, v74, v75")
        A("v_lshrrev_b32 v75, 16, v74")
        A("v_and_b32 v74, 0xffff, v74")
        for h in range(2):
            if e + h > 10:
                continue
            d = vGA + e + h
            A(f"v_subrev_u32 {v(74+h)}, 0x4280, {v(74+h)}")
            A(f"v_cmp_gt_i32 vcc, 128, {v(72+h)}")
            A(f"v_cndmask_b32 {v(74+h)}, {v(74+h)}, {v(72+h)}, vcc")
            A(f"v_cmp_gt_i32 vcc, 0, {v(72+h)}")
            A(f"v_mov_b32 v76, 672")
            A(f"v_cndmask_b32 {v(74+h)}, {v(74+h)}, v76, vcc")
            A(f"v_lshlrev_b32 {v(d)}, 1, {v(74+h)}")
            A(f"v_add_u32 {v(d)}, {GB}, {v(d)}")
    A("v_mov_b32 v72, 0")
    A("v_mov_b32 v73, 0")
    A("v_mov_b32 v74, 0")
    A("v_mov_b32 v75, 0")
    A("v_lshlrev_b32 v76, 4, v29")
    A(f"v_add_u32 v76, {UB}, v76")
    A("v_cmp_gt_u32 vcc, 155, v29")
    A("s_and_saveexec_b64 s[56:57], vcc")
    A("ds_write_b128 v76, v[72:75]")
    A(f"ds_write_b128 v76, v[72:75] offset:{USTR}")
    A("s_mov_b64 exec, s[56:57]")
    A(f"v_mov_b32 v76, {GB + 1344}")
    A("ds_write_b32 v76, v72")
    A(f"ds_write_b32 v76, v72 offset:{GSTR}")
    A(f"s_mul_i32 s{sT0}, s{sW}, {WSC}")
    A(f"v_lshl_add_u32 {v(vKW)}, {v(vLANE)}, 2, s{sT0}")
    A(f"v_mul_u32_u24 {v(vKR)}, {KSTR}, v31")
    A(f"v_lshl_add_u32 {v(vKR)}, v30, 4, {v(vKR)}")
    A(f"v_add_u32 {v(vKR)}, s{sT0}, {v(vKR)}")
    A("v_mov_b32 v72, 0x3f80")
    A(f"ds_write_b32 {v(vKW)}, v72 offset:{22*KSTR}")
    for i in range(16):
        A(f"v_mov_b32 {v(ACC+i)}, 0")
    A(f"s_lshl_b32 s{sT0}, s{sTI}, 13")
    A(f"s_lshl_b32 s{sT1}, s{sW}, 11")
    A(f"s_add_u32 s{sT0}, s{sT0}, s{sT1}")
    A(f"v_lshlrev_b32 v24, 6, v31")
    A(f"v_lshl_add_u32 v24, v30, 5, v24")
    A("v_lshrrev_b32 v72, 2, v29")
    A("v_and_b32 v73, 3, v29")
    A(f"v_lshlrev_b32 {v(vUL)}, 11, v72")
    A(f"v_lshl_add_u32 {v(vUL)}, v73, 4, {v(vUL)}")
    A(f"s_lshl_b32 s{sT1}, s{sTI}, 6")
    A(f"v_add_u32 {v(vUL)}, s{sT1}, {v(vUL)}")
    A("v_lshrrev_b32 v74, 1, v72")
    A(f"v_mul_u32_u24 {v(vUW)}, 80, v74")
    A("v_and_b32 v74, 1, v72")
    A(f"v_lshl_add_u32 {v(vUW)}, v74, 5, {v(vUW)}")
    A("v_lshrrev_b32 v74, 1, v73")
    A(f"v_lshl_add_u32 {v(vUW)}, v74, 4, {v(vUW)}")
    A("v_and_b32 v74, 1, v73")
    A(f"v_mul_u32_u24 v74, {USTR}, v74")
    A(f"v_add_u32 {v(vUW)}, {v(vUW)}, v74")
    A(f"v_add_u32 {v(vUW)}, {UB + 31*80}, {v(vUW)}")
    A("s_waitcnt vmcnt(4)")
    stamp(1)
    for k in range(4):
        A(f"v_perm_b32 {v(T+8+k)}, {v(T+2*k+1)}, {v(T+2*k)}, s{sP0}")
        A(f"v_perm_b32 {v(T+12+k)}, {v(T+2*k+1)}, {v(T+2*k)}, s{sP1}")
    A(f"buffer_store_dwordx4 {v(T+8,4)}, v24, {s(SUT,4)}, s{sT0} offen sc1")
    A(f"buffer_store_dwordx4 {v(T+12,4)}, v24, {s(SUT,4)}, s{sT0} offen offset:16 sc1")
    A(f"global_load_dword {v(vEP)}, {v(vZ)}, s[36:37] sc1")
    A("s_waitcnt lgkmcnt(0)")
    A(f"s_lshl_b32 s{sT1}, s{sCH}, 4")
    A(f"s_lshr_b32 s{sLD}, s{sLD}, s{sT1}")
    A(f"s_lshl_b32 s{sLD}, s{sLD}, 16")
    A(f"s_lshr_b32 s{sDS}, s{sDS}, s{sT1}")
    A(f"s_lshl_b32 s{sDS}, s{sDS}, 16")
    A(f"v_mov_b32 {v(vDT)}, {hex(LOG2E)}")
    A(f"v_mul_f32 {v(vDT)}, s{sLD}, {v(vDT)}")
    A(f"v_exp_f32 {v(vDT)}, {v(vDT)}")
    A(f"v_cvt_pk_bf16_f32 {v(vDT)}, {v(vDT)}, {v(vDT)}")
    A(f"v_lshlrev_b32 {v(vDT)}, 16, {v(vDT)}")
    A(f"s_mov_b32 s{sRD}, 0")
    A("s_waitcnt vmcnt(3)")
    stamp(2)

    A.label("A_kgen")
    ops = []
    reg = [T + 20]

    def newp():
        r = reg[0]
        reg[0] += 2
        assert r + 1 < 256
        return r
    ct = [0]

    def emit(row, p, conj):
        t = T + 8 + (ct[0] % 12)
        ct[0] += 1
        ops.append(f"v_cvt_pk_bf16_f32 {v(t)}, {v(p)}, {'-' if conj else ''}{v(p+1)}")
        ops.append(f"ds_write_b32 {v(vKW)}, {v(t)} offset:{row*KSTR}")

    def cmul(a, b):
        d = newp()
        ops.append(f"v_pk_mul_f32 {v(d,2)}, {v(a,2)}, {v(b,2)} op_sel:[0,0] op_sel_hi:[0,1]")
        ops.append(f"v_pk_fma_f32 {v(d,2)}, {v(a,2)}, {v(b,2)}, {v(d,2)} op_sel:[1,1,0] op_sel_hi:[1,0,1] neg_lo:[1,0,0]")
        return d

    def cexp(n):
        d = newp()
        t = newp()
        if n == 1:
            ops.append(f"v_exp_f32 {v(t)}, {v(T)}")
            ops.append(f"v_fract_f32 {v(t+1)}, {v(T+1)}")
        else:
            lit = {8: "0x41000000", 256: "0x43800000"}[n]
            ops.append(f"v_mul_f32 {v(t)}, {lit}, {v(T)}")
            ops.append(f"v_mul_f32 {v(t+1)}, {lit}, {v(T+1)}")
            ops.append(f"v_exp_f32 {v(t)}, {v(t)}")
            ops.append(f"v_fract_f32 {v(t+1)}, {v(t+1)}")
        ops.append(f"v_cos_f32 {v(d)}, {v(t+1)}")
        ops.append(f"v_sin_f32 {v(d+1)}, {v(t+1)}")
        ops.append(f"v_pk_mul_f32 {v(d,2)}, {v(d,2)}, {v(t,2)} op_sel:[0,0] op_sel_hi:[1,0]")
        return d
    ops.append(f"v_lshlrev_b32 {v(T)}, 16, {v(vIN)}")
    ops.append(f"v_lshlrev_b32 {v(T+1)}, 16, {v(vIN+1)}")
    ops.append(f"v_lshlrev_b32 {v(T+2)}, 16, {v(vIN+2)}")
    ops.append(f"v_lshlrev_b32 {v(T+3)}, 16, {v(vIN+3)}")
    for k in range(4):
        ops.append(f"v_lshrrev_b32 {v(vIN+k)}, 16, {v(vIN+k)}")
    ops.append(f"v_mul_f32 {v(T)}, {hex(LOG2E)}, {v(T)}")
    ops.append(f"v_exp_f32 {v(T)}, {v(T)}")
    ops.append(f"v_cvt_pk_bf16_f32 {v(T)}, {v(T)}, {v(T)}")
    ops.append(f"v_lshlrev_b32 {v(T)}, 16, {v(T)}")
    ops.append(f"v_mul_f32 {v(T)}, {v(T)}, {v(vDT)}")
    ops.append(f"v_mul_f32 {v(T)}, {hex(LOG2E | 0x80000000)}, {v(T)}")
    ops.append(f"v_mul_f32 {v(T+1)}, {v(T+1)}, {v(vDT)}")
    ops.append(f"v_mul_f32 {v(T+1)}, {INV2PI}, {v(T+1)}")
    ops.append(f"v_add_f32 {v(T+4)}, {v(vDT)}, {v(vDT)}")
    c0 = newp()
    ops.append(f"v_pk_mul_f32 {v(c0,2)}, {v(T+2,2)}, {v(T+4,2)} op_sel:[0,0] op_sel_hi:[1,0]")
    w1 = cexp(8)
    z1 = cexp(1)
    v1 = cexp(256)
    W = {1: w1}
    W[2] = cmul(w1, w1)
    W[3] = cmul(W[2], w1)
    W[4] = cmul(W[2], W[2])
    for f in range(5, 32):
        W[f] = cmul(W[f - 4], W[4])
    z2 = cmul(z1, z1)
    z4 = cmul(z2, z2)
    c = {0: c0}
    c[1] = cmul(c0, z1)
    c[2] = cmul(c0, z2)
    c[3] = cmul(c[1], z2)
    for k in range(4):
        c[4 + k] = cmul(c[k], z4)
    v2 = cmul(v1, v1)
    S = {1: cmul(c0, v1), 2: cmul(c0, v2)}
    for k in range(3, 9):
        S[k] = cmul(S[k - 2], v2)
    rows = {}
    for k in range(8):
        rows[k] = c[k]
    rows[8] = S[1]
    rows[9] = cmul(c[2], v1)
    rows[12] = cmul(c[4], v1)
    rows[13] = cmul(c[6], v1)
    rows[10] = S[2]
    rows[11] = cmul(c[4], v2)
    rows[14] = S[3]
    rows[15] = cmul(S[3], z4)
    rows[16], rows[17], rows[20], rows[21], rows[18] = S[4], S[5], S[6], S[7], S[8]
    order = [("B", f) for f in range(1, 5)] + [("A", k) for k in (0, 1, 2, 8, 10)] + [("B", f) for f in range(5, 9)] + \
            [("A", k) for k in (3, 4, 5, 6, 9, 14, 16)] + [("B", f) for f in range(9, 17)] + \
            [("A", k) for k in (7, 12, 13, 11, 15, 17, 20)] + [("B", f) for f in range(17, 25)] + \
            [("A", k) for k in (21, 18)] + [("B", f) for f in range(25, 32)]
    for kind, k in order:
        if kind == "A":
            emit(k, rows[k], True)
        else:
            emit(22 + k, W[k], False)
    for o in schedule(ops):
        A(o)
    FA = 96
    for k in range(8):
        A(f"ds_read_b128 {v(FA+8*k,4)}, {v(vKR)} offset:{32*k}")
        A(f"ds_read_b128 {v(FA+8*k+4,4)}, {v(vKR)} offset:{22*KSTR+32*k}")
        if k == 6:
            A("s_waitcnt lgkmcnt(12)")
            A(f"v_mfma_f32_32x32x16_bf16 {v(ACC,16)}, {v(FA,4)}, {v(FA+4,4)}, {v(ACC,16)}")
    for k in range(1, 8):
        A(f"s_waitcnt lgkmcnt({14-2*k})")
        A(f"v_mfma_f32_32x32x16_bf16 {v(ACC,16)}, {v(FA+8*k,4)}, {v(FA+8*k+4,4)}, {v(ACC,16)}")
    A(f"s_cmp_lg_u32 s{sRD}, 0")
    A("s_cbranch_scc1 A_kdone")
    A(f"s_mov_b32 s{sRD}, 1")
    stamp(3)
    poll_epoch(vEP, vZ, 36, sEP, "A_ep", 0)
    A("s_barrier")
    A(f"s_cmp_lg_u32 s{sW}, 0")
    A("s_cbranch_scc1 A_kgen")
    A(f"s_lshl_b32 s{sT0}, s{sA}, 2")
    A(f"s_add_u32 s{sT0}, s{sT0}, {hex(WS_FLAGU)}")
    A(f"v_mov_b32 v24, s{sT0}")
    A(f"v_mov_b32 v25, s{sEP}")
    A("s_mov_b64 exec, 1")
    A("global_store_dword v24, v25, s[38:39] sc1")
    A("s_mov_b64 exec, -1")
    A("s_branch A_kgen")
    A.label("A_kdone")
    stamp(4)
    A(f"s_lshl_b32 s{sT0}, s{sG}, 7")
    A(f"s_add_u32 s{sT0}, s{sT0}, {hex(WS_FLAGU)}")
    A(f"v_lshl_add_u32 v24, v31, 2, s{sT0}")
    A.label("A_up")
    spin_guard()
    A("global_load_dword v25, v24, s[38:39] sc1")
    A("s_waitcnt vmcnt(0)")
    A(f"v_cmp_eq_u32 vcc, s{sEP}, v25")
    A("s_cmp_eq_u64 vcc, -1")
    A("s_cbranch_scc0 A_up")
    stamp(5)
    UR = 160
    A(f"s_mov_b32 s{sT1}, {64*2048}")
    A(f"buffer_load_dwordx4 {v(UR,4)}, {v(vUL)}, {s(SUT,4)}, 0 offen sc1")
    A(f"buffer_load_dwordx4 {v(UR+4,4)}, {v(vUL)}, {s(SUT,4)}, s{sT1} offen sc1")
    A(f"s_mul_i32 s{sT0}, s{sW}, {WSC}")
    A(f"v_lshl_add_u32 v24, {v(vLANE)}, 4, s{sT0}")
    A(f"s_xor_b32 s{sT1}, s{sW}, 1")
    A(f"s_mul_i32 s{sT1}, s{sT1}, {WSC}")
    A(f"v_lshl_add_u32 v25, {v(vLANE)}, 4, s{sT1}")
    A(f"s_mul_i32 s{sT0}, s{sCH}, {GSTR}")
    A(f"s_add_u32 s{sT0}, s{sT0}, {GB}")
    A(f"s_cmp_lg_u32 s{sMH}, 0")
    A("s_cbranch_scc1 A_x1")
    A(f"ds_write_b128 v24, {v(ACC+6,4)}")
    A(f"ds_write_b128 v24, {v(ACC+10,4)} offset:1024")
    A("v_lshlrev_b32 v26, 4, v31")
    A("v_lshl_add_u32 v26, v30, 3, v26")
    A(f"v_add_u32 v26, s{sT0}, v26")
    A("v_lshlrev_b32 v27, 3, v31")
    A("v_lshl_add_u32 v27, v30, 2, v27")
    A(f"v_add_u32 v27, s{sT0}, v27")
    A("s_waitcnt lgkmcnt(0)")
    A("s_barrier")
    A(f"ds_read_b128 {v(T,4)}, v25")
    A(f"ds_read_b64 {v(T+4,2)}, v25 offset:1024")
    A("s_mov_b64 exec, 1")
    A(f"v_add_f32 {v(ACC)}, s{sDS}, {v(ACC)}")
    A("s_mov_b64 exec, -1")
    A("s_waitcnt lgkmcnt(0)")
    for k in range(0, 6, 2):
        A(f"v_pk_add_f32 {v(ACC+k,2)}, {v(ACC+k,2)}, {v(T+k,2)}")
    for k in range(0, 6, 2):
        A(f"v_cvt_pk_bf16_f32 {v(T+k)}, {v(ACC+k)}, {v(ACC+k+1)}")
    A(f"ds_write_b16 v26, {v(T)}")
    A(f"ds_write_b16_d16_hi v26, {v(T)} offset:2")
    A(f"ds_write_b16 v26, {v(T+2)} offset:4")
    A(f"ds_write_b16_d16_hi v26, {v(T+2)} offset:6")
    A(f"ds_write_b16 v27, {v(T+4)} offset:512")
    A(f"ds_write_b16_d16_hi v27, {v(T+4)} offset:514")
    A("s_branch A_x2")
    A.label("A_x1")
    A(f"ds_write_b128 v24, {v(ACC,4)}")
    A(f"ds_write_b64 v24, {v(ACC+4,2)} offset:1024")
    A("v_lshlrev_b32 v26, 2, v31")
    A("v_lshl_add_u32 v26, v30, 7, v26")
    A(f"v_add_u32 v26, s{sT0}, v26")
    A("v_lshlrev_b32 v27, 1, v31")
    A("v_lshl_add_u32 v27, v30, 7, v27")
    A(f"v_add_u32 v27, s{sT0}, v27")
    A("s_waitcnt lgkmcnt(0)")
    A("s_barrier")
    A(f"ds_read_b128 {v(T,4)}, v25")
    A(f"ds_read_b64 {v(T+4,2)}, v25 offset:1024")
    A("s_waitcnt lgkmcnt(0)")
    for k in range(0, 6, 2):
        A(f"v_pk_add_f32 {v(ACC+6+k,2)}, {v(ACC+6+k,2)}, {v(T+k,2)}")
    for k in range(0, 6, 2):
        A(f"v_cvt_pk_bf16_f32 {v(T+k)}, {v(ACC+6+k)}, {v(ACC+6+k+1)}")
    A(f"ds_write_b16 v26, {v(T)} offset:768")
    A(f"ds_write_b16_d16_hi v26, {v(T)} offset:770")
    A(f"ds_write_b16 v27, {v(T+2)} offset:1024")
    A(f"ds_write_b16_d16_hi v27, {v(T+2)} offset:1088")
    A("s_mov_b64 exec, 0xffffffff")
    A(f"ds_write_b16 v27, {v(T+4)} offset:1280")
    A("s_mov_b64 exec, -1")
    A.label("A_x2")
    A("s_waitcnt lgkmcnt(0)")
    A("s_barrier")
    stamp(6)
    for ch in range(2):
        for e in range(11):
            A(f"ds_read_u16 {v(T+16*ch+e)}, {v(vGA+e)} offset:{ch*GSTR}")
            if ch == 1 and e == 3:
                A("s_waitcnt lgkmcnt(4)")
    A("v_lshlrev_b32 v24, 4, v29")
    A(f"v_lshrrev_b32 v25, 4, {v(vLANE)}")
    A(f"v_mul_u32_u24 v25, {KCH}, v25")
    A(f"v_bfe_u32 v26, {v(vLANE)}, 2, 2")
    A(f"v_mul_u32_u24 v26, {KCP}, v26")
    A(f"v_and_b32 v27, 3, {v(vLANE)}")
    A("v_lshl_add_u32 v25, v27, 4, v25")
    A("v_add_u32 v25, v25, v26")
    Q = 100
    for i in range(4):
        A(f"v_mov_b32 {v(Q+32+i)}, 0")
    for ch in range(2):
        if ch == 1:
            A("s_waitcnt lgkmcnt(4)")
        for cpy in range(4):
            q = Q + 16 * ch + 4 * cpy
            for k in range(4):
                e = cpy + 2 * k
                A(f"v_lshl_or_b32 {v(q+k)}, {v(T+16*ch+e+1)}, 16, {v(T+16*ch+e)}")
            A(f"ds_write_b128 v24, {v(q,4)} offset:{KB+ch*KCH+cpy*KCP}")
    A("s_mov_b64 exec, 0xffffffff")
    A(f"ds_write_b128 v25, {v(Q+32,4)} offset:{KB+4096}")
    A("s_mov_b64 exec, -1")
    A("s_waitcnt vmcnt(0)")
    A(f"ds_write_b128 {v(vUW)}, {v(UR,4)}")
    A(f"ds_write_b128 {v(vUW)}, {v(UR+4,4)} offset:2560")
    vA, vB = 4, 5
    A("v_bfe_u32 v24, v31, 2, 1")
    A("v_lshrrev_b32 v25, 3, v31")
    A("v_and_b32 v26, 3, v31")
    A("v_sub_u32 v26, 3, v26")
    A(f"v_mul_u32_u24 v26, {KCP}, v26")
    A("v_lshlrev_b32 v24, 5, v24")
    A("v_lshl_add_u32 v24, v25, 3, v24")
    A("v_sub_u32 v26, v26, v24")
    A("v_lshl_add_u32 v26, v30, 4, v26")
    A(f"s_mul_i32 s{sT0}, s{sCH}, {KCH}")
    A(f"s_lshl_b32 s{sT1}, s{sMH}, 10")
    A(f"s_sub_u32 s{sT0}, s{sT0}, s{sT1}")
    A(f"s_add_u32 s{sT0}, s{sT0}, {KB + 2*2044 - 2048}")
    A(f"v_add_u32 {v(vA)}, s{sT0}, v26")
    A(f"v_mul_u32_u24 v24, 80, v31")
    A("v_lshl_add_u32 v24, v30, 4, v24")
    A(f"s_mul_i32 s{sT0}, s{sCH}, {USTR}")
    A(f"s_mul_i32 s{sT1}, s{sMH}, {16*80}")
    A(f"s_sub_u32 s{sT0}, s{sT0}, s{sT1}")
    A(f"s_add_u32 s{sT0}, s{sT0}, {UB + 31*80}")
    A(f"v_add_u32 {v(vB)}, s{sT0}, v24")
    for i in range(32):
        A(f"v_mov_b32 {v(ACC+i)}, 0")
    A("s_waitcnt lgkmcnt(0)")
    A("s_barrier")
    stamp(7)

    def rd(buf):
        for sx in range(2):
            b = buf + 16 * sx
            A(f"ds_read_b64 {v(b,2)}, {v(vA)} offset:{2048+32*sx}")
            A(f"ds_read_b64 {v(b+2,2)}, {v(vA)} offset:{2048+32*sx+8}")
            A(f"ds_read_b128 {v(b+8,4)}, {v(vB)} offset:{32*sx}")
            A(f"ds_read_b128 {v(b+12,4)}, {v(vB)} offset:{2560+32*sx}")
            A(f"ds_read_b64 {v(b+4,2)}, {v(vA)} offset:{32*sx}")
            A(f"ds_read_b64 {v(b+6,2)}, {v(vA)} offset:{32*sx+8}")
        A(f"v_subrev_u32 {v(vA)}, 64, {v(vA)}")
        A(f"v_subrev_u32 {v(vB)}, 80, {v(vB)}")

    def mm(buf, nxt):
        lines = []
        for sx in range(2):
            b = buf + 16 * sx
            lines.append(f"v_mfma_f32_32x32x16_bf16 {v(ACC,16)}, {v(b,4)}, {v(b+8,4)}, {v(ACC,16)}")
            lines.append(f"v_mfma_f32_32x32x16_bf16 {v(ACC+16,16)}, {v(b,4)}, {v(b+12,4)}, {v(ACC+16,16)}")
            lines.append(f"v_mfma_f32_32x32x16_bf16 {v(ACC+16,16)}, {v(b+4,4)}, {v(b+8,4)}, {v(ACC+16,16)}")
        rl = []
        for sx in range(2):
            b = nxt + 16 * sx
            rl += [f"ds_read_b64 {v(b,2)}, {v(vA)} offset:{2048+32*sx}",
                   f"ds_read_b64 {v(b+2,2)}, {v(vA)} offset:{2048+32*sx+8}",
                   f"ds_read_b128 {v(b+8,4)}, {v(vB)} offset:{32*sx}",
                   f"ds_read_b128 {v(b+12,4)}, {v(vB)} offset:{2560+32*sx}",
                   f"ds_read_b64 {v(b+4,2)}, {v(vA)} offset:{32*sx}",
                   f"ds_read_b64 {v(b+6,2)}, {v(vA)} offset:{32*sx+8}"]
        A("s_waitcnt lgkmcnt(0)")
        for k in range(6):
            A(lines[k])
            A(rl[2 * k])
            A(rl[2 * k + 1])
        A(f"v_subrev_u32 {v(vA)}, 64, {v(vA)}")
        A(f"v_subrev_u32 {v(vB)}, 80, {v(vB)}")
    B0, B1 = 64, 96
    rd(B0)
    A(f"s_mov_b32 s{sRD}, 8")
    A.label("A_conv")
    mm(B0, B1)
    mm(B1, B0)
    A(f"s_sub_u32 s{sRD}, s{sRD}, 1")
    A(f"s_cmp_lg_u32 s{sRD}, 0")
    A("s_cbranch_scc1 A_conv")
    stamp(8)
    A(f"s_lshl_b32 s{sT0}, s{sW}, 12")
    A(f"s_add_u32 s{sT0}, s{sT0}, {RX}")
    A(f"v_lshl_add_u32 v24, {v(vLANE)}, 4, s{sT0}")
    A(f"s_xor_b32 s{sT1}, s{sW}, 1")
    A(f"s_lshl_b32 s{sT1}, s{sT1}, 12")
    A(f"s_add_u32 s{sT1}, s{sT1}, {RX}")
    A(f"v_lshl_add_u32 v25, {v(vLANE)}, 4, s{sT1}")
    A("v_lshrrev_b32 v26, 1, v31")
    A("v_lshlrev_b32 v26, 13, v26")
    A("v_and_b32 v27, 1, v31")
    A("v_lshl_add_u32 v26, v27, 6, v26")
    A("v_lshl_add_u32 v26, v30, 5, v26")
    A(f"s_lshl_b32 s{sT0}, s{sMH}, 17")
    A(f"s_lshl_b32 s{sT1}, s{sTI}, 8")
    A(f"s_add_u32 s{sT0}, s{sT0}, s{sT1}")
    A(f"s_lshl_b32 s{sT1}, s{sCH}, 7")
    A(f"s_add_u32 s{sT0}, s{sT0}, s{sT1}")
    A("s_waitcnt lgkmcnt(0)")
    A(f"s_cmp_lg_u32 s{sMH}, 0")
    A("s_cbranch_scc1 A_r1")
    for mh in range(2):
        keep, send = (ACC, ACC + 16) if mh == 0 else (ACC + 16, ACC)
        if mh == 1:
            A.label("A_r1")
        for k in range(4):
            A(f"ds_write_b128 v24, {v(send+4*k,4)} offset:{k*1024}")
        A("s_waitcnt lgkmcnt(0)")
        A("s_barrier")
        for k in range(4):
            A(f"ds_read_b128 {v(T+4*k,4)}, v25 offset:{k*1024}")
        for k in range(4):
            A(f"s_waitcnt lgkmcnt({3-k})")
            A(f"v_pk_add_f32 {v(T+4*k,2)}, {v(T+4*k,2)}, {v(keep+4*k,2)}")
            A(f"v_pk_add_f32 {v(T+4*k+2,2)}, {v(T+4*k+2,2)}, {v(keep+4*k+2,2)}")
        if mh == 0:
            A("s_branch A_r2")
    A.label("A_r2")
    for k in range(8):
        A(f"v_cvt_pk_bf16_f32 {v(T+16+k)}, {v(T+2*k)}, {v(T+2*k+1)}")
    A(f"buffer_store_dwordx4 {v(T+16,4)}, v26, {s(SAT,4)}, s{sT0} offen sc1")
    A(f"buffer_store_dwordx4 {v(T+20,4)}, v26, {s(SAT,4)}, s{sT0} offen offset:16 sc1")
    A("v_lshlrev_b32 v24, 4, v29")
    A("v_lshrrev_b32 v25, 3, v29")
    A("v_mul_u32_u24 v25, 132, v25")
    A("v_and_b32 v27, 7, v29")
    A("v_lshl_add_u32 v25, v27, 4, v25")
    A(f"v_add_u32 v25, {OB}, v25")
    A(f"v_and_b32 v27, 15, {v(vLANE)}")
    A(f"v_lshrrev_b32 v28, 4, {v(vLANE)}")
    A(f"v_mul_u32_u24 v4, 528, v27")
    A("v_lshl_add_u32 v4, v28, 1, v4")
    A(f"s_lshl_b32 s{sT1}, s{sW}, 5")
    A(f"s_add_u32 s{sT1}, s{sT1}, {OB}")
    A(f"v_add_u32 v4, s{sT1}, v4")
    A(f"v_mul_u32_u24 v5, 3584, v28")
    A("v_lshl_add_u32 v5, v27, 4, v5")
    for i in range(16):
        A(f"v_mov_b32 {v(ACC+i)}, 0")
    A(f"s_lshl_b32 s{sT0}, s{sG}, 7")
    A(f"s_add_u32 s{sT0}, s{sT0}, {hex(WS_FLAGA)}")
    A(f"v_lshl_add_u32 v6, v31, 2, s{sT0}")
    A("s_waitcnt vmcnt(0)")
    A("s_barrier")
    stamp(9)
    A(f"s_cmp_lg_u32 s{sW}, 0")
    A("s_cbranch_scc1 A_ap")
    A(f"s_lshl_b32 s{sT1}, 1, s{sTI}")
    A(f"s_mov_b32 exec_lo, s{sT1}")
    A("s_mov_b32 exec_hi, 0")
    A(f"v_mov_b32 v7, s{sEP}")
    A("global_store_dword v6, v7, s[38:39] sc1")
    A("s_mov_b64 exec, -1")
    A.label("A_ap")
    spin_guard()
    A("global_load_dword v7, v6, s[38:39] sc1")
    A("s_waitcnt vmcnt(0)")
    A(f"v_cmp_eq_u32 vcc, s{sEP}, v7")
    A("s_cmp_eq_u64 vcc, -1")
    A("s_cbranch_scc0 A_ap")
    stamp(10)
    A(f"s_lshl_b32 s{sT0}, s{sTI}, 13")
    A(f"s_add_u32 s{sT1}, s{sT0}, 4096")
    A(f"buffer_load_dwordx4 {v(T,4)}, v24, {s(SAT,4)}, s{sT0} offen sc1")
    A(f"buffer_load_dwordx4 {v(T+4,4)}, v24, {s(SAT,4)}, s{sT1} offen sc1")
    A(f"v_add_u32 v26, {32*132}, v25")
    A(f"s_lshl_b32 s{sT0}, s{sTI}, 6")
    A(f"s_lshl_b32 s{sT1}, s{sW}, 4")
    A(f"s_add_u32 s{sT0}, s{sT0}, s{sT1}")
    A(f"s_mul_i32 s{sT0}, s{sT0}, 3584")
    A(f"s_lshl_b32 s{sT1}, s{sG}, 8")
    A(f"s_add_u32 s{sT0}, s{sT0}, s{sT1}")
    A("s_waitcnt vmcnt(1)")
    A(f"ds_write2_b32 v25, {v(T)}, {v(T+1)} offset0:0 offset1:1")
    A(f"ds_write2_b32 v25, {v(T+2)}, {v(T+3)} offset0:2 offset1:3")
    A("s_waitcnt vmcnt(0)")
    A(f"ds_write2_b32 v26, {v(T+4)}, {v(T+5)} offset0:0 offset1:1")
    A(f"ds_write2_b32 v26, {v(T+6)}, {v(T+7)} offset0:2 offset1:3")
    A("s_waitcnt lgkmcnt(0)")
    A("s_barrier")
    for n in range(4):
        for r in range(4):
            A(f"ds_read_u16_d16_hi {v(ACC+4*n+r)}, v4 offset:{r*132+n*8}")
        if n == 2:
            A("s_waitcnt lgkmcnt(8)")
            A(f"buffer_store_dwordx4 {v(ACC,4)}, v5, {s(SOUT,4)}, s{sT0} offen")
            A(f"s_add_u32 s{sT0}, s{sT0}, {4*3584}")
    for n in range(1, 4):
        A(f"s_waitcnt lgkmcnt({12-4*n})")
        A(f"buffer_store_dwordx4 {v(ACC+4*n,4)}, v5, {s(SOUT,4)}, s{sT0} offen")
        A(f"s_add_u32 s{sT0}, s{sT0}, {4*3584}")
    stamps_flush(38, "A_st")
    A("s_endpgm")
```

```python
import sys
from asmlib import Asm, hazard_pass, v, s

NAME = "concat_heads__ssm_conv_s4d__ssm_conv_s5__prompt"
STAMPS = "--stamps" in sys.argv
ONLY = None
for a_ in sys.argv:
    if a_.startswith("--only="):
        ONLY = a_[7:]

WS_EPOCH = 0
WS_FLAGH = 0x1000
WS_FLAGU = 0x2000
WS_FLAGA = 0x3000
WS_E = 0x10000
WS_H = 0x100000
WS_UT = 0x500000
WS_AT = 0x700000
WS_STAMP = 0xC00000
NST = 32
LOG2E = 0x3fb8aa3b
INV2PI = "0.15915494"

A = Asm()


def srd(dst, base, nbytes, off=0):
    if off == 0:
        A(f"s_mov_b32 s{dst}, s{base}")
        A(f"s_and_b32 s{dst+1}, s{base+1}, 0xffff")
    else:
        o = off if isinstance(off, str) else hex(off)
        A(f"s_add_u32 s{dst}, s{base}, {o}")
        A(f"s_addc_u32 s{dst+1}, s{base+1}, 0")
        A(f"s_and_b32 s{dst+1}, s{dst+1}, 0xffff")
    A(f"s_mov_b32 s{dst+2}, {hex(nbytes)}")
    A(f"s_mov_b32 s{dst+3}, 0x20000")


VST = 0


def stamp(i):
    if not STAMPS:
        return
    A("s_memrealtime s[96:97]")
    A("s_waitcnt lgkmcnt(0)")
    A(f"v_writelane_b32 v{G_VST[0]}, s96, {i}")


G_VST = [VST]


def stamps_init():
    if not STAMPS:
        return
    A(f"v_mov_b32 v{G_VST[0]}, 0")


def stamps_flush(ws, lab):
    if not STAMPS:
        return
    A("s_waitcnt vmcnt(0)")
    stamp(NST - 1)
    A(f"s_cmp_lg_u32 s9, 0")
    A(f"s_cbranch_scc1 {lab}")
    A(f"s_mul_i32 s96, s2, {NST*8}")
    A(f"s_add_u32 s96, s96, {hex(WS_STAMP)}")
    A("v_mbcnt_lo_u32_b32 v2, -1, 0")
    A("v_lshl_add_u32 v2, v2, 3, s96")
    A("s_mov_b64 exec, 0xffffffff")
    A(f"v_mov_b32 v4, v{G_VST[0]}")
    A(f"v_cmp_ne_u32 vcc, 0, v4")
    A(f"v_cndmask_b32 v5, 0, 1, vcc")
    A(f"global_store_dwordx2 v2, v[4:5], s[{ws}:{ws+1}]")
    A.label(lab)


def cmul(d, a, b):
    A(f"v_pk_mul_f32 {v(d,2)}, {v(a,2)}, {v(b,2)} op_sel:[0,0] op_sel_hi:[0,1]")
    A(f"v_pk_fma_f32 {v(d,2)}, {v(a,2)}, {v(b,2)}, {v(d,2)} op_sel:[1,1,0] op_sel_hi:[1,0,1] neg_lo:[1,0,0]")


def cfma(d, a, b, c):
    A(f"v_pk_fma_f32 {v(d,2)}, {v(a,2)}, {v(b,2)}, {v(c,2)} op_sel:[0,0,0] op_sel_hi:[0,1,1]")
    A(f"v_pk_fma_f32 {v(d,2)}, {v(a,2)}, {v(b,2)}, {v(d,2)} op_sel:[1,1,0] op_sel_hi:[1,0,1] neg_lo:[1,0,0]")


def cexp(d, lr, rev, n, t0):
    if n is None:
        A(f"v_exp_f32 {v(t0)}, {v(lr)}")
        A(f"v_fract_f32 {v(t0+1)}, {v(rev)}")
    else:
        A(f"v_mul_f32 {v(t0)}, {n}, {v(lr)}")
        A(f"v_mul_f32 {v(t0+1)}, {n}, {v(rev)}")
        A(f"v_exp_f32 {v(t0)}, {v(t0)}")
        A(f"v_fract_f32 {v(t0+1)}, {v(t0+1)}")
    A(f"v_cos_f32 {v(d)}, {v(t0+1)}")
    A(f"v_sin_f32 {v(d+1)}, {v(t0+1)}")
    A(f"v_pk_mul_f32 {v(d,2)}, {v(d,2)}, {v(t0,2)} op_sel:[0,0] op_sel_hi:[1,0]")


SPIN = 98


def spin_guard():
    A(f"s_sub_u32 s{SPIN}, s{SPIN}, 1")
    A("s_cbranch_scc1 L_exit")


def poll_epoch(vt, vz, dbg, sdst, lab, first_wait):
    A(f"s_waitcnt vmcnt({first_wait})")
    A(f"v_readfirstlane_b32 s{sdst}, {v(vt)}")
    A(f"s_cmp_lg_u32 s{sdst}, 0")
    A(f"s_cbranch_scc1 {lab}_ok")
    A.label(f"{lab}_retry")
    spin_guard()
    A("s_sleep 1")
    A(f"global_load_dword {v(vt)}, {v(vz)}, s[{dbg}:{dbg+1}] sc1")
    A("s_waitcnt vmcnt(0)")
    A(f"v_readfirstlane_b32 s{sdst}, {v(vt)}")
    A(f"s_cmp_eq_u32 s{sdst}, 0")
    A(f"s_cbranch_scc1 {lab}_retry")
    A.label(f"{lab}_ok")


def gen_B():
    SX, SBR, SBI, SCR, SCI, SOUT, SE, SH = 40, 44, 48, 52, 56, 60, 64, 68
    sTTL, sJ, sTT, sKB, sW, sTW, sPW = 5, 6, 7, 8, 9, 10, 11
    sXO, sBO, sT0, sT1, sEP, sMW = 12, 13, 14, 15, 72, 73
    sHI = 74
    sJQ = 76
    vLANE, vDA0, vDA1 = 1, 2, 3
    vXA, vBA = 4, 8
    vLAM, vNLI = 12, 14
    vZ = 15
    vGAM, vL16, vLS, vW, vMU = 16, 18, 20, 22, 24
    vT = 26
    vD = 28
    vEP = 29
    vTMP = 30
    ACR, ACI = 32, 48
    FR = 64
    PR, PI = 112, 128
    CREG = 144
    XOFF = 73728
    SCR = 40960
    HSLOT = [40960, 57344, 0, 16384]

    A.label("B_entry")
    A("s_load_dwordx16 s[16:31], s[0:1], 56")
    A("s_load_dwordx8 s[32:39], s[0:1], 120")
    A("s_and_b32 s3, s2, 7")
    A("s_lshr_b32 s4, s2, 3")
    A("s_cmp_ge_u32 s4, 28")
    A("s_cbranch_scc1 B_idle")
    A("v_lshrrev_b32 v30, 6, v0")
    A(f"v_and_b32 {v(vLANE)}, 63, v0")
    if STAMPS:
        A("s_memrealtime s[94:95]")
    stamps_init()
    A("s_setprio 2")
    A(f"s_mul_i32 s{sTTL}, s4, 37")
    A(f"s_lshr_b32 s{sTTL}, s{sTTL}, 8")
    A(f"s_mul_i32 s{sT0}, s{sTTL}, 7")
    A(f"s_sub_u32 s{sJ}, s4, s{sT0}")
    A(f"s_lshr_b32 s{sT0}, s3, 1")
    A(f"s_and_b32 s{sT0}, s{sT0}, 2")
    A(f"s_xor_b32 s3, s3, s{sT0}")
    A(f"s_lshl_b32 s{sTT}, s3, 2")
    A(f"s_add_u32 s{sTT}, s{sTT}, s{sTTL}")
    A(f"s_lshl_b32 s{sT0}, s{sTTL}, 1")
    A(f"s_add_u32 s{sKB}, s{sJ}, s{sT0}")
    A(f"s_sub_u32 s{sT0}, s{sKB}, 7")
    A(f"s_cmp_ge_u32 s{sKB}, 7")
    A(f"s_cselect_b32 s{sKB}, s{sT0}, s{sKB}")
    A(f"s_lshl_b32 s{sKB}, s{sKB}, 7")
    A(f"s_mul_i32 s{sXO}, s{sTT}, 57344")
    A(f"s_mul_i32 s{sBO}, s{sJ}, 57344")
    A(f"v_readfirstlane_b32 s{sW}, v30")
    A(f"v_mov_b32 {v(vZ)}, 0")
    A(f"s_and_b32 s{sTW}, s{sW}, 1")
    A(f"s_lshr_b32 s{sPW}, s{sW}, 1")
    A(f"s_lshl_b32 s{sMW}, s{sW}, 11")
    A(f"s_mov_b32 s{sHI}, 0")
    A(f"s_mov_b32 s{sHI+1}, -1")
    A(f"v_lshrrev_b32 v30, 3, {v(vLANE)}")
    A(f"s_lshl_b32 s{sT0}, s{sW}, 4")
    A(f"v_add_u32 v30, s{sT0}, v30")
    A(f"v_mul_u32_u24 v30, 896, v30")
    A(f"v_lshrrev_b32 v31, 4, {v(vLANE)}")
    A(f"v_and_b32 {v(vDA0)}, 7, {v(vLANE)}")
    A(f"v_xor_b32 v31, v31, {v(vDA0)}")
    A(f"v_lshl_add_u32 {v(vDA0)}, v31, 4, v30")
    A(f"v_xor_b32 v31, 4, v31")
    A(f"v_lshl_add_u32 {v(vDA1)}, v31, 4, v30")
    A(f"v_add_u32 {v(vDA1)}, {8*896}, {v(vDA1)}")
    A(f"v_and_b32 v30, 31, {v(vLANE)}")
    A(f"s_lshl_b32 s{sT0}, s{sJ}, 6")
    A(f"s_lshl_b32 s{sT1}, s{sPW}, 5")
    A(f"s_add_u32 s{sT1}, s{sT1}, s{sT0}")
    A(f"v_add_lshl_u32 v30, v30, s{sT1}, 1")
    A(f"v_and_b32 v31, 15, {v(vLANE)}")
    A(f"s_lshl_b32 s{sT1}, s{sW}, 4")
    A(f"s_add_u32 s{sT1}, s{sT1}, s{sT0}")
    A(f"v_add_lshl_u32 v31, v31, s{sT1}, 1")
    A("s_waitcnt lgkmcnt(0)")
    if STAMPS:
        A("v_writelane_b32 v0, s94, 0")
    stamp(11)
    A("global_load_ushort v64, v30, s[18:19]")
    A("global_load_ushort v65, v30, s[20:21]")
    A("global_load_ushort v66, v30, s[30:31]")
    A(f"global_load_ushort {v(vD)}, v31, s[32:33]")
    srd(SX, 16, 1835008)
    srd(SBR, 22, 401408)
    srd(SBI, 24, 401408)

    def dma_stage(slot):
        A(f"s_add_u32 s{sT0}, s{sXO}, s{sKB}")
        A(f"s_add_u32 m0, s{sMW}, {slot*24576}")
        A(f"s_add_u32 s{sT1}, s{sBO}, s{sKB}")
        A(f"buffer_load_dwordx4 {v(vDA0)}, {s(SX,4)}, s{sT0} offen lds")
        A("s_add_u32 m0, m0, 1024")
        A(f"s_add_u32 s{sKB}, s{sKB}, 128")
        A(f"buffer_load_dwordx4 {v(vDA1)}, {s(SX,4)}, s{sT0} offen lds")
        A("s_add_u32 m0, m0, 7168")
        A(f"s_cmp_eq_u32 s{sKB}, 896")
        A(f"buffer_load_dwordx4 {v(vDA0)}, {s(SBR,4)}, s{sT1} offen lds")
        A(f"s_cselect_b32 s{sKB}, 0, s{sKB}")
        A("s_add_u32 m0, m0, 1024")
        A(f"buffer_load_dwordx4 {v(vDA1)}, {s(SBR,4)}, s{sT1} offen lds")
        A("s_add_u32 m0, m0, 7168")
        A(f"buffer_load_dwordx4 {v(vDA0)}, {s(SBI,4)}, s{sT1} offen lds")
        A("s_add_u32 m0, m0, 1024")
        A(f"buffer_load_dwordx4 {v(vDA1)}, {s(SBI,4)}, s{sT1} offen lds")

    for st in range(3):
        dma_stage(st)
    stamp(12)
    srd(52, 26, 401408)
    srd(56, 28, 401408)
    srd(SOUT, 34, 7340032)
    A(f"s_lshl_b32 s{sT0}, s{sJ}, 1")
    A(f"s_add_u32 s{sT0}, s{sT0}, s{sPW}")
    A(f"s_lshl_b32 s{sT0}, s{sT0}, 13")
    A(f"s_add_u32 s{sT0}, s{sT0}, {hex(WS_E)}")
    srd(SE, 38, 8192, off=f"s{sT0}")
    A(f"s_mul_i32 s{sT0}, s{sTT}, {7*16384}")
    A(f"s_add_u32 s{sT0}, s{sT0}, {hex(WS_H)}")
    srd(SH, 38, 7 * 16384, off=f"s{sT0}")
    A(f"v_and_b32 v30, 31, {v(vLANE)}")
    A(f"v_lshrrev_b32 v31, 5, {v(vLANE)}")
    A(f"v_bfe_u32 v67, v30, 2, 1")
    A(f"v_lshlrev_b32 v67, 4, v67")
    A(f"v_lshrrev_b32 v68, 3, v30")
    A(f"v_lshl_add_u32 v67, v68, 2, v67")
    A(f"v_and_b32 v68, 3, v30")
    A(f"v_add_u32 v67, v67, v68")
    A(f"s_lshl_b32 s{sT0}, s{sTW}, 5")
    A(f"v_add_u32 v67, s{sT0}, v67")
    A(f"v_bfe_u32 v68, v67, 1, 3")
    A(f"v_xor_b32 v68, v68, v31")
    A(f"v_lshlrev_b32 v68, 4, v68")
    A(f"v_lshl_add_u32 {v(vXA)}, v67, 7, v68")
    A(f"s_lshl_b32 s{sT0}, s{sPW}, 5")
    A(f"v_add_u32 v67, s{sT0}, v30")
    A(f"v_bfe_u32 v68, v67, 1, 3")
    A(f"v_xor_b32 v68, v68, v31")
    A(f"v_lshlrev_b32 v68, 4, v68")
    A(f"v_lshl_add_u32 {v(vBA)}, v67, 7, v68")
    A(f"v_add_u32 {v(vBA)}, 8192, {v(vBA)}")
    for k in range(1, 4):
        A(f"v_xor_b32 {v(vXA+k)}, {32*k}, {v(vXA)}")
        A(f"v_xor_b32 {v(vBA+k)}, {32*k}, {v(vBA)}")
    A(f"s_lshl_b32 s{sT0}, s{sTW}, 1")
    A(f"v_add_u32 v31, s{sT0}, v31")
    A(f"v_cvt_f32_u32 v69, v31")
    A("s_waitcnt vmcnt(18)")
    stamp(1)
    A("v_lshlrev_b32 v64, 16, v64")
    A("v_lshlrev_b32 v65, 16, v65")
    A("v_lshlrev_b32 v66, 16, v66")
    A(f"v_lshlrev_b32 {v(vD)}, 16, {v(vD)}")
    A(f"v_mul_f32 v66, {hex(LOG2E)}, v66")
    A("v_exp_f32 v66, v66")
    A("v_cvt_pk_bf16_f32 v66, v66, v66")
    A("v_lshlrev_b32 v66, 16, v66")
    A("v_mul_f32 v70, v66, v64")
    A("v_mul_f32 v71, v66, v65")
    A(f"v_mul_f32 v70, {hex(LOG2E)}, v70")
    A(f"v_mul_f32 v71, {INV2PI}, v71")
    cexp(vLAM, 70, 71, None, 72)
    A("v_mul_f32 v74, 0x41800000, v69")
    A("v_mul_f32 v75, 0x42800000, v69")
    cexp(vL16, 70, 71, "0x41800000", 72)
    cexp(vLS, 70, 71, "v74", 72)
    cexp(vW, 70, 71, "v75", 72)
    cexp(vMU, 70, 71, "0x43800000", 72)
    A(f"v_sub_f32 {v(vNLI)}, 0, {v(vLAM+1)}")
    A(f"v_add_f32 v72, -1.0, {v(vLAM)}")
    A("v_mul_f32 v73, v64, v64")
    A("v_fmac_f32 v73, v65, v65")
    A("v_rcp_f32 v73, v73")
    A("v_mul_f32 v74, v72, v64")
    A(f"v_fmac_f32 v74, {v(vLAM+1)}, v65")
    A(f"v_mul_f32 v75, {v(vLAM+1)}, v64")
    A("v_fma_f32 v75, -v72, v65, v75")
    A("v_add_f32 v73, v73, v73")
    A(f"v_mul_f32 {v(vGAM)}, v74, v73")
    A(f"v_mul_f32 {v(vGAM+1)}, v75, v73")
    for i in range(16):
        pr, pi = (vGAM, vGAM + 1) if i == 0 else (PR + i - 1, PI + i - 1)
        A(f"v_mul_f32 {v(PR+i)}, {v(vLAM)}, {v(pr)}")
        A(f"v_mul_f32 {v(PI+i)}, {v(vLAM)}, {v(pi)}")
        A(f"v_fmac_f32 {v(PR+i)}, {v(vNLI)}, {v(pi)}")
        A(f"v_fmac_f32 {v(PI+i)}, {v(vLAM+1)}, {v(pr)}")
    stamp(2)

    def c_round_issue(blocks, base, wstride):
        A(f"s_mul_i32 s{sT1}, s{sW}, {wstride}")
        A(f"s_add_u32 m0, s{sT1}, {base}")
        for n, b in enumerate(blocks):
            q, comp = b // 2, b % 2
            if comp == 0:
                if q == 0:
                    A(f"s_lshl_b32 s{sJQ}, s{sJ}, 7")
                else:
                    A(f"s_add_u32 s{sJQ}, s{sJQ}, 128")
                    A(f"s_cmp_eq_u32 s{sJQ}, 896")
                    A(f"s_cselect_b32 s{sJQ}, 0, s{sJQ}")
            A(f"s_add_u32 s{sT0}, s{sBO}, s{sJQ}")
            sr = 52 if comp == 0 else 56
            A(f"buffer_load_dwordx4 {v(vDA0)}, {s(sr,4)}, s{sT0} offen lds")
            A("s_add_u32 m0, m0, 1024")
            A(f"buffer_load_dwordx4 {v(vDA1)}, {s(sr,4)}, s{sT0} offen lds")
            if n != len(blocks) - 1:
                A("s_add_u32 m0, m0, 1024")

    def c_round_read(blocks, base, va0, va1):
        for n, b in enumerate(blocks):
            q, comp = b // 2, b % 2
            f = 4 * q + 2 * comp
            A(f"ds_read_b128 {v(CREG+4*f,4)}, {v(va0)} offset:{base+n*2048}")
            A(f"ds_read_b128 {v(CREG+4*f+4,4)}, {v(va1)} offset:{base+n*2048}")

    for st in range(7):
        slot = st % 3
        A(f"s_waitcnt vmcnt({12 if st == 0 else 7 if st == 6 else 6})")
        A("s_barrier")
        if st == 0:
            stamp(3)
        else:
            stamp(16 + st)
        if 1 <= st <= 4:
            dma_stage((st + 2) % 3)
        if st == 5:
            A(f"global_load_dword {v(vEP)}, {v(vZ)}, s[36:37] sc1")
            c_round_issue([0, 1, 2], 24576, 6144)
        if st == 6:
            c_round_issue([3, 4, 5], 49152, 6144)
        for k in range(4):
            A(f"ds_read_b128 {v(FR+12*k,4)}, {v(vXA+k)} offset:{slot*24576}")
            A(f"ds_read_b128 {v(FR+12*k+4,4)}, {v(vBA+k)} offset:{slot*24576}")
            A(f"ds_read_b128 {v(FR+12*k+8,4)}, {v(vBA+k)} offset:{slot*24576+8192}")
        for k in range(4):
            A(f"s_waitcnt lgkmcnt({9-3*k})")
            c0 = "0" if (st == 0 and k == 0) else v(ACR, 16)
            c1 = "0" if (st == 0 and k == 0) else v(ACI, 16)
            A(f"v_mfma_f32_32x32x16_bf16 {v(ACR,16)}, {v(FR+12*k,4)}, {v(FR+12*k+4,4)}, {c0}")
            A(f"v_mfma_f32_32x32x16_bf16 {v(ACI,16)}, {v(FR+12*k,4)}, {v(FR+12*k+8,4)}, {c1}")
    stamp(4)
    vEXA, vCA0, vCA1, vCB0, vCB1, vLBA, vNV, vSCW, vSCR, vHA, vXO, vOO = 4, 5, 6, 7, 8, 9, 10, 11, 100, 101, 102, 103
    A(f"v_and_b32 v64, 31, {v(vLANE)}")
    A(f"v_lshrrev_b32 v65, 5, {v(vLANE)}")
    A(f"s_lshl_b32 s{sT0}, s{sTW}, 1")
    A(f"v_add_u32 v66, s{sT0}, v65")
    A(f"s_lshl_b32 s{sT1}, s{sPW}, 10")
    A(f"s_add_u32 s{sT1}, s{sT1}, {XOFF}")
    A(f"v_lshl_add_u32 {v(vEXA)}, v64, 5, s{sT1}")
    A(f"v_lshl_add_u32 v67, v66, 3, {v(vEXA)}")
    A(f"s_sub_u32 s{sT0}, 32, s{sTT}")
    A(f"v_add_u32 v68, s{sT0}, v66")
    A(f"v_lshlrev_b32 v68, 8, v68")
    A(f"v_lshl_add_u32 {v(vLBA)}, v64, 3, v68")
    A(f"s_add_u32 s{sT0}, s{sTT}, 3")
    A(f"v_sub_u32 {v(vNV)}, s{sT0}, v66")
    A(f"v_lshrrev_b32 {v(vNV)}, 2, {v(vNV)}")
    A(f"s_mul_i32 s{sT0}, s{sW}, 5120")
    A(f"s_add_u32 s{sT0}, s{sT0}, {SCR}")
    A(f"v_mul_u32_u24 v68, 1280, v65")
    A(f"v_lshl_add_u32 v68, v64, 1, v68")
    A(f"v_add_u32 {v(vSCW)}, s{sT0}, v68")
    for t in range(1, 16):
        A(f"v_fmac_f32 {v(ACR+t)}, {v(vLAM)}, {v(ACR+t-1)}")
        A(f"v_fmac_f32 {v(ACI+t)}, {v(vLAM)}, {v(ACI+t-1)}")
        A(f"v_fmac_f32 {v(ACR+t)}, {v(vNLI)}, {v(ACI+t-1)}")
        A(f"v_fmac_f32 {v(ACI+t)}, {v(vLAM+1)}, {v(ACR+t-1)}")
    stamp(13)
    A(f"ds_write2_b32 v67, {v(ACR+15)}, {v(ACI+15)} offset0:0 offset1:1")
    A("s_waitcnt lgkmcnt(0)")
    A("s_barrier")
    A(f"ds_read_b128 v[68:71], {v(vEXA)}")
    A(f"ds_read_b128 v[72:75], {v(vEXA)} offset:16")
    c_round_issue([6, 7, 8], 0, 6144)
    A(f"s_sub_u32 s{sT0}, 31, s{sTT}")
    A(f"s_lshl_b32 s{sT0}, s{sT0}, 8")
    A(f"v_lshl_add_u32 v84, v64, 3, s{sT0}")
    A("s_waitcnt lgkmcnt(0)")
    cfma(76, vL16, 68, 70)
    cfma(78, vL16, 76, 72)
    cfma(80, vL16, 78, 74)
    poll_epoch(vEP, vZ, 36, sEP, "B_ep", 18)
    A("v_cvt_pk_bf16_f32 v82, v80, v81")
    A(f"v_mov_b32 v83, s{sEP}")
    A(f"s_lshl_b32 s{sT0}, s{sTW}, 4")
    A(f"s_lshl_b32 s{sT0}, 0xffff, s{sT0}")
    A(f"s_mov_b32 exec_lo, s{sT0}")
    A("s_mov_b32 exec_hi, 0")
    A(f"buffer_store_dwordx2 v[82:83], v84, {s(SE,4)}, 0 offen sc1")
    A("s_mov_b64 exec, -1")
    stamp(5)
    A(f"s_cmp_eq_u32 s{sTW}, 0")
    A("s_cbranch_scc1 B_tw0")
    A(f"v_cndmask_b32 {v(vT)}, v76, v78, s[{sHI}:{sHI+1}]")
    A(f"v_cndmask_b32 {v(vT+1)}, v77, v79, s[{sHI}:{sHI+1}]")
    A("s_branch B_tw1")
    A.label("B_tw0")
    A(f"v_cndmask_b32 {v(vT)}, 0, v68, s[{sHI}:{sHI+1}]")
    A(f"v_cndmask_b32 {v(vT+1)}, 0, v69, s[{sHI}:{sHI+1}]")
    A.label("B_tw1")
    XS = 84
    A(f"v_and_b32 v68, 15, {v(vLANE)}")
    A(f"v_lshrrev_b32 v69, 4, {v(vLANE)}")
    A(f"v_mul_u32_u24 {v(vXO)}, {4*896}, v69")
    A(f"v_lshl_add_u32 {v(vXO)}, v68, 1, {v(vXO)}")
    A(f"v_mul_u32_u24 {v(vOO)}, {4*3584}, v69")
    A(f"v_lshl_add_u32 {v(vOO)}, v68, 2, {v(vOO)}")
    A(f"s_lshl_b32 s{sT0}, s{sJ}, 7")
    A(f"s_lshl_b32 s{sT1}, s{sW}, 5")
    A(f"s_add_u32 s{sT0}, s{sT0}, s{sT1}")
    A(f"s_add_u32 s{sT0}, s{sT0}, s{sXO}")
    for i in range(16):
        A(f"v_mov_b32 {v(XS+i)}, 0")
    for rt in range(4):
        for r in range(4):
            A(f"buffer_load_short_d16_hi {v(XS+4*rt+r)}, {v(vXO)}, {s(SX,4)}, s{sT0} offen offset:{r*896}")
        if rt < 3:
            A(f"s_add_u32 s{sT0}, s{sT0}, {16*896}")
    A(f"v_bfe_u32 v70, v68, 1, 3")
    A(f"v_xor_b32 v70, v70, v69")
    A(f"v_lshlrev_b32 v70, 4, v70")
    A(f"v_lshl_add_u32 v70, v68, 7, v70")
    A(f"s_mul_i32 s{sT0}, s{sW}, 6144")
    A(f"v_add_u32 {v(vCA0)}, s{sT0}, v70")
    A(f"v_xor_b32 {v(vCA1)}, 64, {v(vCA0)}")
    A(f"s_lshl_b32 s{sT0}, s{sW}, 12")
    A(f"v_add_u32 {v(vCB0)}, s{sT0}, v70")
    A(f"v_xor_b32 {v(vCB1)}, 64, {v(vCB0)}")
    A(f"s_mul_i32 s{sT0}, s{sW}, 5120")
    A(f"s_add_u32 s{sT0}, s{sT0}, {SCR}")
    A(f"v_mul_u32_u24 v70, 80, v68")
    A(f"v_lshl_add_u32 v70, v69, 4, v70")
    A(f"v_add_u32 {v(vSCR)}, s{sT0}, v70")
    A(f"v_lshlrev_b32 {v(vHA)}, 4, {v(vLANE)}")
    A(f"v_mov_b32 v108, {v(vGAM+1)}")
    for t in range(0, 16, 2):
        tm = 104 + (t & 2)
        A(f"v_pk_mul_f32 {v(tm,2)}, {v(ACR+t,2)}, v[108:109] op_sel_hi:[1,0]")
        A(f"v_pk_mul_f32 {v(ACR+t,2)}, {v(ACR+t,2)}, {v(vGAM,2)} op_sel_hi:[1,0]")
        A(f"v_pk_fma_f32 {v(ACR+t,2)}, {v(ACI+t,2)}, v[108:109], {v(ACR+t,2)} op_sel_hi:[1,0,1] neg_lo:[1,0,0] neg_hi:[1,0,0]")
        A(f"v_pk_fma_f32 {v(ACI+t,2)}, {v(ACI+t,2)}, {v(vGAM,2)}, {v(tm,2)} op_sel_hi:[1,0,1]")
    A("s_waitcnt vmcnt(29)")
    c_round_read([0, 1, 2], 24576, vCA0, vCA1)
    A("s_waitcnt vmcnt(23)")
    c_round_read([3, 4, 5], 49152, vCA0, vCA1)
    LB = 64
    A(f"s_movk_i32 s{sT1}, 4096")

    def lb_issue():
        for i in range(8):
            so = "0" if i < 4 else f"s{sT1}"
            A(f"buffer_load_dwordx2 {v(LB+2*i,2)}, {v(vLBA)}, {s(SE,4)}, {so} offen offset:{(i%4)*1024} sc1")
    lb_issue()
    A("s_waitcnt vmcnt(25)")
    A("s_waitcnt lgkmcnt(4)")
    c_round_read([6, 7, 8], 0, vCA0, vCA1)
    A("s_waitcnt vmcnt(8)")
    for i in range(16):
        A(f"v_mul_f32 {v(XS+i)}, {v(XS+i)}, {v(vD)}")
    A(f"v_mul_lo_u32 {v(vNV)}, {v(vNV)}, s{sEP}")
    stamp(14)
    A.label("B_lb")
    A("s_waitcnt vmcnt(0)")
    A(f"v_add3_u32 v80, {v(LB+1)}, {v(LB+3)}, {v(LB+5)}")
    A(f"v_add3_u32 v81, {v(LB+7)}, {v(LB+9)}, {v(LB+11)}")
    A(f"v_add3_u32 v80, v80, {v(LB+13)}, {v(LB+15)}")
    A(f"v_add_u32 v80, v80, v81")
    A(f"v_cmp_eq_u32 vcc, v80, {v(vNV)}")
    A("s_cmp_eq_u64 vcc, -1")
    A("s_cbranch_scc1 B_lb_ok")
    spin_guard()
    lb_issue()
    A("s_branch B_lb")
    A.label("B_lb_ok")
    stamp(6)
    for i in range(8):
        A(f"v_and_b32 {v(LB+2*i+1)}, 0xffff0000, {v(LB+2*i)}")
        A(f"v_lshlrev_b32 {v(LB+2*i)}, 16, {v(LB+2*i)}")
    for i in range(6, -1, -1):
        cfma(LB + 2 * i, vMU, LB + 2 * i + 2, LB + 2 * i)
    cmul(80, vW, LB)
    A(f"v_lshrrev_b32 v65, 5, {v(vLANE)}")
    A(f"s_lshl_b32 s{sT0}, s{sTW}, 1")
    A(f"v_add_u32 v66, s{sT0}, v65")
    A(f"v_lshl_add_u32 v67, v66, 3, {v(vEXA)}")
    A(f"ds_write_b64 v67, v[80:81] offset:2048")
    A("s_waitcnt lgkmcnt(0)")
    A("s_barrier")
    A(f"ds_read_b128 v[68:71], {v(vEXA)} offset:2048")
    A(f"ds_read_b128 v[72:75], {v(vEXA)} offset:2064")
    A("s_waitcnt lgkmcnt(0)")
    A("v_pk_add_f32 v[68:69], v[68:69], v[70:71]")
    A("v_pk_add_f32 v[72:73], v[72:73], v[74:75]")
    A("v_pk_add_f32 v[68:69], v[68:69], v[72:73]")
    cfma(vT, vLS, 68, vT)
    A(f"v_mov_b32 v108, {v(vT+1)}")
    for t in range(0, 16, 2):
        A(f"v_pk_fma_f32 {v(ACR+t,2)}, {v(PR+t,2)}, {v(vT,2)}, {v(ACR+t,2)} op_sel_hi:[1,0,1]")
        A(f"v_pk_fma_f32 {v(ACI+t,2)}, {v(PR+t,2)}, v[108:109], {v(ACI+t,2)} op_sel_hi:[1,0,1]")
        A(f"v_pk_fma_f32 {v(ACR+t,2)}, {v(PI+t,2)}, v[108:109], {v(ACR+t,2)} op_sel_hi:[1,0,1] neg_lo:[1,0,0] neg_hi:[1,0,0]")
        A(f"v_pk_fma_f32 {v(ACI+t,2)}, {v(PI+t,2)}, {v(vT,2)}, {v(ACI+t,2)} op_sel_hi:[1,0,1]")
        A(f"v_cvt_pk_bf16_f32 {v(64+t)}, {v(ACR+t)}, {v(ACR+t+1)}")
        A(f"v_cvt_pk_bf16_f32 {v(65+t)}, -{v(ACI+t)}, -{v(ACI+t+1)}")
        A(f"ds_write_b16 {v(vSCW)}, {v(64+t)} offset:{t*80}")
        A(f"ds_write_b16_d16_hi {v(vSCW)}, {v(64+t)} offset:{(t+1)*80}")
        A(f"ds_write_b16 {v(vSCW)}, {v(65+t)} offset:{2560+t*80}")
        A(f"ds_write_b16_d16_hi {v(vSCW)}, {v(65+t)} offset:{2560+(t+1)*80}")
    A("s_waitcnt lgkmcnt(0)")
    for comp in range(2):
        for rt in range(2):
            A(f"ds_read_b128 {v(32+8*comp+4*rt,4)}, {v(vSCR)} offset:{comp*2560+rt*1280}")
    stamp(15)
    A(f"s_lshl_b32 s{sT0}, s{sJ}, 14")
    A(f"s_lshl_b32 s{sT1}, s{sPW}, 12")
    A(f"s_add_u32 s{sT0}, s{sT0}, s{sT1}")
    A(f"s_lshl_b32 s{sT1}, s{sTW}, 11")
    A(f"s_add_u32 s{sT0}, s{sT0}, s{sT1}")
    A(f"s_add_u32 s{sT1}, s{sT0}, 8192")
    for comp in range(2):
        for rt in range(2):
            n = 2 * comp + rt
            A(f"s_waitcnt lgkmcnt({3-n})")
            A(f"buffer_store_dwordx4 {v(32+8*comp+4*rt,4)}, {v(vHA)}, {s(SH,4)}, s{sT0 if comp == 0 else sT1} offen offset:{rt*1024} sc1")
    A("s_waitcnt vmcnt(0)")
    A("s_barrier")
    stamp(7)
    A(f"s_lshl_b32 s{sT0}, s{sTT}, 7")
    A(f"s_add_u32 s{sT0}, s{sT0}, {hex(WS_FLAGH)}")
    A(f"v_lshl_add_u32 v64, {v(vLANE)}, 2, s{sT0}")
    A(f"s_cmp_lg_u32 s{sW}, 0")
    A("s_cbranch_scc1 B_noflag")
    A(f"s_lshl_b32 s{sT1}, 1, s{sJ}")
    A(f"s_mov_b32 exec_lo, s{sT1}")
    A("s_mov_b32 exec_hi, 0")
    A(f"v_mov_b32 v65, s{sEP}")
    A("global_store_dword v64, v65, s[38:39] sc1")
    A("s_mov_b64 exec, -1")
    A.label("B_noflag")
    c_round_issue([9, 10, 11], 0, 6144)
    c_round_issue([12, 13], 24576, 4096)
    A("s_mov_b64 exec, 0x7f")
    A.label("B_hp")
    spin_guard()
    A("global_load_dword v65, v64, s[38:39] sc1")
    A("s_waitcnt vmcnt(0)")
    A(f"v_cmp_eq_u32 vcc, s{sEP}, v65")
    A("s_cmp_eq_u64 vcc, exec")
    A("s_cbranch_scc0 B_hp")
    A("s_mov_b64 exec, -1")
    stamp(8)
    A(f"s_lshl_b32 s{sJQ}, s{sJ}, 14")
    A(f"s_lshl_b32 s{sMW}, s{sW}, 12")

    def h_issue(q):
        A(f"s_add_u32 m0, s{sMW}, {HSLOT[q % 4]}")
        A(f"s_add_u32 s{sT0}, s{sJQ}, s{sMW}")
        for i in range(4):
            A(f"buffer_load_dwordx4 {v(vHA)}, {s(SH,4)}, s{sT0} offen offset:{i*1024} sc1 lds")
        A(f"s_add_u32 s{sJQ}, s{sJQ}, 16384")
        A(f"s_cmp_eq_u32 s{sJQ}, {7*16384}")
        A(f"s_cselect_b32 s{sJQ}, 0, s{sJQ}")
    h_issue(0)
    h_issue(1)
    A(f"v_add_u32 v136, 40960, {v(vHA)}")
    c_round_read([9, 10, 11], 0, vCA0, vCA1)
    c_round_read([12, 13], 24576, vCB0, vCB1)
    AC2 = XS
    HF = 32
    hf = [32 + 4 * i for i in range(8)] + [104 + 4 * i for i in range(8)]
    waits = [4, 8, 8, 8, 8, 4, 0]
    for q in range(7):
        A(f"s_waitcnt vmcnt({waits[q]}) lgkmcnt(0)")
        A("s_barrier")
        if q == 0:
            stamp(9)
            h_issue(2)
            h_issue(3)
        else:
            stamp(23 + q)
        if 1 <= q <= 3:
            h_issue(q + 3)
        base = HSLOT[q % 4]

        def rd(kk):
            for rt in range(4):
                if base >= 40960:
                    A(f"ds_read_b128 {v(hf[4*kk+rt],4)}, v136 offset:{base-40960+(4*kk+rt)*1024}")
                else:
                    A(f"ds_read_b128 {v(hf[4*kk+rt],4)}, {v(vHA)} offset:{base+(4*kk+rt)*1024}")

        def mm(kk):
            for rt in range(4):
                A(f"v_mfma_f32_16x16x32_bf16 {v(AC2+4*rt,4)}, {v(hf[4*kk+rt],4)}, {v(CREG+4*(4*q+kk),4)}, {v(AC2+4*rt,4)}")
        rd(0); rd(1); rd(2)
        A("s_waitcnt lgkmcnt(8)")
        mm(0)
        rd(3)
        A("s_waitcnt lgkmcnt(8)")
        mm(1)
        A("s_waitcnt lgkmcnt(4)")
        mm(2)
        A("s_waitcnt lgkmcnt(0)")
        mm(3)
    stamp(10)
    A(f"s_mul_i32 s{sT0}, s{sTT}, {64*3584}")
    A(f"s_lshl_b32 s{sT1}, s{sJ}, 8")
    A(f"s_add_u32 s{sT0}, s{sT0}, s{sT1}")
    A(f"s_lshl_b32 s{sT1}, s{sW}, 6")
    A(f"s_add_u32 s{sT0}, s{sT0}, s{sT1}")
    A(f"s_add_u32 s{sT0}, s{sT0}, 1792")
    for rt in range(4):
        for r in range(0, 4, 2):
            A(f"buffer_store_dword {v(AC2+4*rt+r)}, {v(vOO)}, {s(SOUT,4)}, s{sT0} offen")
            A(f"buffer_store_dword {v(AC2+4*rt+r+1)}, {v(vOO)}, {s(SOUT,4)}, s{sT0} offen offset:3584")
            A(f"s_add_u32 s{sT0}, s{sT0}, {2*3584 if r == 0 else 14*3584}")
    stamps_flush(38, "B_st")
    A("s_endpgm")

    A.label("B_idle")
    A("s_cmp_lg_u32 s4, 28")
    A("s_cbranch_scc1 L_exit")
    A("v_cmp_eq_u32 vcc, 0, v0")
    A("s_and_saveexec_b64 s[4:5], vcc")
    A("s_cbranch_execz L_exit")
    A("s_waitcnt lgkmcnt(0)")
    A("v_mov_b32 v1, 0")
    A("global_load_dword v2, v1, s[38:39] sc1")
    A("v_mov_b32 v3, 0")
    A("s_waitcnt vmcnt(0)")
    A("v_add_u32 v2, 1, v2")
    A("v_max_u32 v2, 1, v2")
    A("global_atomic_cmpswap v4, v1, v[2:3], s[36:37] sc0 sc1")
    A("s_waitcnt vmcnt(0)")
    A("v_cmp_eq_u32 vcc, 0, v4")
    A("s_and_saveexec_b64 s[4:5], vcc")
    A("s_cbranch_execz L_exit")
    A("global_store_dword v1, v2, s[38:39] sc1")
    A("s_endpgm")


def main():
    hdr = open("cdna_kernels/" + NAME + ".s.ref").read().split("\n")
    top = [l for l in hdr if l.startswith(";") and "@launch" not in l]
    out = top + ["; @launch grid=(512,1,1) block=(256,1,1) lds=81920"]
    out += ['.amdgcn_target "amdgcn-amd-amdhsa--gfx950"', ".text", f".globl {NAME}_kernel", ".p2align 8",
            f".type {NAME}_kernel,@function", f"{NAME}_kernel:"]
    A(f"s_mov_b32 s{SPIN}, 0x40000")
    A("s_cmp_ge_u32 s2, 512")
    A("s_cbranch_scc1 L_exit")
    A("s_cmp_ge_u32 s2, 256")
    A("s_cbranch_scc1 A_entry")
    gen_B()
    import gen_a
    gen_a.gen_A(A, globals())
    A.label("L_exit")
    A("s_endpgm")
    out += hazard_pass(A.lines)
    out += ['.section .rodata,"a"', ".p2align 6", f".amdhsa_kernel {NAME}_kernel",
            "  .amdhsa_next_free_vgpr 256", "  .amdhsa_next_free_sgpr 102", "  .amdhsa_accum_offset 256",
            "  .amdhsa_group_segment_fixed_size 0", "  .amdhsa_kernarg_size 152", "  .amdhsa_user_sgpr_count 2",
            "  .amdhsa_user_sgpr_kernarg_segment_ptr 1", "  .amdhsa_system_sgpr_workgroup_id_x 1",
            ".end_amdhsa_kernel", ""]
    dst = [a for a in sys.argv[1:] if not a.startswith("--")]
    open(dst[0] if dst else "k.s", "w").write("\n".join(out))


if __name__ == "__main__":
    main()
```

```python
import sys
from asmlib import Asm, hazard_pass, v, s

NAME = "concat_heads__ssm_conv_s4d__ssm_conv_s5__prompt"
STAMPS = "--stamps" in sys.argv
SPAN = "--span" in sys.argv
ONLY = None
for a_ in sys.argv:
    if a_.startswith("--only="):
        ONLY = a_[7:]

WS_EPOCH = 0
WS_FLAGH = 0x1000
WS_FLAGU = 0x2000
WS_FLAGA = 0x3000
WS_E = 0x10000
WS_H = 0x100000
WS_UT = 0x500000
WS_AT = 0x700000
WS_STAMP = 0xC00000
NST = 32
LOG2E = 0x3fb8aa3b
INV2PI = "0.15915494"

A = Asm()


def srd(dst, base, nbytes, off=0):
    if off == 0:
        A(f"s_mov_b32 s{dst}, s{base}")
        A(f"s_and_b32 s{dst+1}, s{base+1}, 0xffff")
    else:
        o = off if isinstance(off, str) else hex(off)
        A(f"s_add_u32 s{dst}, s{base}, {o}")
        A(f"s_addc_u32 s{dst+1}, s{base+1}, 0")
        A(f"s_and_b32 s{dst+1}, s{dst+1}, 0xffff")
    A(f"s_mov_b32 s{dst+2}, {hex(nbytes)}")
    A(f"s_mov_b32 s{dst+3}, 0x20000")


VST = 0


def stamp(i):
    if not STAMPS:
        return
    A("s_memrealtime s[96:97]")
    A("s_waitcnt lgkmcnt(0)")
    A(f"v_writelane_b32 v{G_VST[0]}, s96, {i}")


G_VST = [VST]


def stamps_init():
    if not STAMPS:
        return
    A(f"v_mov_b32 v{G_VST[0]}, 0")


def stamps_flush(ws, lab):
    if SPAN:
        A("s_waitcnt vmcnt(0)")
        A("s_memrealtime s[96:97]")
        A("s_cmp_lg_u32 s9, 0")
        A(f"s_cbranch_scc1 {lab}")
        A("s_waitcnt lgkmcnt(0)")
        A("s_not_b32 s94, s94")
        A("v_mov_b32 v2, 0")
        A("v_mov_b32 v4, s94")
        A("v_mov_b32 v5, s96")
        A("s_mov_b64 exec, 1")
        o = 8 if lab.startswith("B") else 16
        A(f"global_atomic_umax v2, v4, s[36:37] offset:{o} sc1")
        A(f"global_atomic_umax v2, v5, s[36:37] offset:{o+4} sc1")
        A.label(lab)
        return
    if not STAMPS:
        return
    A("s_waitcnt vmcnt(0)")
    stamp(NST - 1)
    A(f"s_cmp_lg_u32 s9, 0")
    A(f"s_cbranch_scc1 {lab}")
    A(f"s_mul_i32 s96, s2, {NST*8}")
    A(f"s_add_u32 s96, s96, {hex(WS_STAMP)}")
    A("v_mbcnt_lo_u32_b32 v2, -1, 0")
    A("v_lshl_add_u32 v2, v2, 3, s96")
    A("s_mov_b64 exec, 0xffffffff")
    A(f"v_mov_b32 v4, v{G_VST[0]}")
    A(f"v_cmp_ne_u32 vcc, 0, v4")
    A(f"v_cndmask_b32 v5, 0, 1, vcc")
    A(f"global_store_dwordx2 v2, v[4:5], s[{ws}:{ws+1}]")
    A.label(lab)


def cmul(d, a, b):
    A(f"v_pk_mul_f32 {v(d,2)}, {v(a,2)}, {v(b,2)} op_sel:[0,0] op_sel_hi:[0,1]")
    A(f"v_pk_fma_f32 {v(d,2)}, {v(a,2)}, {v(b,2)}, {v(d,2)} op_sel:[1,1,0] op_sel_hi:[1,0,1] neg_lo:[1,0,0]")


def cfma(d, a, b, c):
    A(f"v_pk_fma_f32 {v(d,2)}, {v(a,2)}, {v(b,2)}, {v(c,2)} op_sel:[0,0,0] op_sel_hi:[0,1,1]")
    A(f"v_pk_fma_f32 {v(d,2)}, {v(a,2)}, {v(b,2)}, {v(d,2)} op_sel:[1,1,0] op_sel_hi:[1,0,1] neg_lo:[1,0,0]")


def cexp(d, lr, rev, n, t0):
    if n is None:
        A(f"v_exp_f32 {v(t0)}, {v(lr)}")
        A(f"v_fract_f32 {v(t0+1)}, {v(rev)}")
    else:
        A(f"v_mul_f32 {v(t0)}, {n}, {v(lr)}")
        A(f"v_mul_f32 {v(t0+1)}, {n}, {v(rev)}")
        A(f"v_exp_f32 {v(t0)}, {v(t0)}")
        A(f"v_fract_f32 {v(t0+1)}, {v(t0+1)}")
    A(f"v_cos_f32 {v(d)}, {v(t0+1)}")
    A(f"v_sin_f32 {v(d+1)}, {v(t0+1)}")
    A(f"v_pk_mul_f32 {v(d,2)}, {v(d,2)}, {v(t0,2)} op_sel:[0,0] op_sel_hi:[1,0]")


SPIN = 98


def spin_guard():
    A(f"s_sub_u32 s{SPIN}, s{SPIN}, 1")
    A("s_cbranch_scc1 L_exit")


def poll_epoch(vt, vz, dbg, sdst, lab, first_wait):
    A(f"s_waitcnt vmcnt({first_wait})")
    A(f"v_readfirstlane_b32 s{sdst}, {v(vt)}")
    A(f"s_cmp_lg_u32 s{sdst}, 0")
    A(f"s_cbranch_scc1 {lab}_ok")
    A.label(f"{lab}_retry")
    spin_guard()
    A("s_sleep 1")
    A(f"global_load_dword {v(vt)}, {v(vz)}, s[{dbg}:{dbg+1}] sc1")
    A("s_waitcnt vmcnt(0)")
    A(f"v_readfirstlane_b32 s{sdst}, {v(vt)}")
    A(f"s_cmp_eq_u32 s{sdst}, 0")
    A(f"s_cbranch_scc1 {lab}_retry")
    A.label(f"{lab}_ok")


def gen_B():
    SX, SBR, SBI, SCR, SCI, SOUT, SE, SH = 40, 44, 48, 52, 56, 60, 64, 68
    sTTL, sJ, sTT, sKB, sW, sTW, sPW = 5, 6, 7, 8, 9, 10, 11
    sXO, sBO, sT0, sT1, sEP, sMW = 12, 13, 14, 15, 72, 73
    sHI = 74
    sJQ = 76
    vLANE, vDA0, vDA1 = 1, 2, 3
    vXA, vBA = 4, 8
    vLAM, vNLI = 12, 14
    vZ = 15
    vGAM, vL16, vLS, vW, vMU = 16, 18, 20, 22, 24
    vT = 26
    vD = 28
    vEP = 29
    vTMP = 30
    ACR, ACI = 32, 48
    FR = 64
    PR, PI = 112, 128
    CREG = 144
    XOFF = 73728
    SCR = 40960
    HSLOT = [40960, 57344, 0, 16384]

    A.label("B_entry")
    A("s_load_dwordx16 s[16:31], s[0:1], 56")
    A("s_load_dwordx8 s[32:39], s[0:1], 120")
    A("s_and_b32 s3, s2, 7")
    A("s_lshr_b32 s4, s2, 3")
    A("s_cmp_ge_u32 s4, 28")
    A("s_cbranch_scc1 B_idle")
    A("v_lshrrev_b32 v30, 6, v0")
    A(f"v_and_b32 {v(vLANE)}, 63, v0")
    if STAMPS or SPAN:
        A("s_memrealtime s[94:95]")
    stamps_init()
    A("s_setprio 2")
    A(f"s_mul_i32 s{sTTL}, s4, 37")
    A(f"s_lshr_b32 s{sTTL}, s{sTTL}, 8")
    A(f"s_mul_i32 s{sT0}, s{sTTL}, 7")
    A(f"s_sub_u32 s{sJ}, s4, s{sT0}")
    A(f"s_lshr_b32 s{sT0}, s3, 1")
    A(f"s_and_b32 s{sT0}, s{sT0}, 2")
    A(f"s_xor_b32 s3, s3, s{sT0}")
    A(f"s_lshl_b32 s{sTT}, s3, 2")
    A(f"s_add_u32 s{sTT}, s{sTT}, s{sTTL}")
    A(f"s_lshl_b32 s{sT0}, s{sTTL}, 1")
    A(f"s_add_u32 s{sKB}, s{sJ}, s{sT0}")
    A(f"s_sub_u32 s{sT0}, s{sKB}, 7")
    A(f"s_cmp_ge_u32 s{sKB}, 7")
    A(f"s_cselect_b32 s{sKB}, s{sT0}, s{sKB}")
    A(f"s_lshl_b32 s{sKB}, s{sKB}, 7")
    A(f"s_mul_i32 s{sXO}, s{sTT}, 57344")
    A(f"s_mul_i32 s{sBO}, s{sJ}, 57344")
    A(f"v_readfirstlane_b32 s{sW}, v30")
    A(f"v_mov_b32 {v(vZ)}, 0")
    A(f"s_and_b32 s{sTW}, s{sW}, 1")
    A(f"s_lshr_b32 s{sPW}, s{sW}, 1")
    A(f"s_lshl_b32 s{sMW}, s{sW}, 11")
    A(f"s_mov_b32 s{sHI}, 0")
    A(f"s_mov_b32 s{sHI+1}, -1")
    A(f"v_lshrrev_b32 v30, 3, {v(vLANE)}")
    A(f"s_lshl_b32 s{sT0}, s{sW}, 4")
    A(f"v_add_u32 v30, s{sT0}, v30")
    A(f"v_mul_u32_u24 v30, 896, v30")
    A(f"v_lshrrev_b32 v31, 4, {v(vLANE)}")
    A(f"v_and_b32 {v(vDA0)}, 7, {v(vLANE)}")
    A(f"v_xor_b32 v31, v31, {v(vDA0)}")
    A(f"v_lshl_add_u32 {v(vDA0)}, v31, 4, v30")
    A(f"v_xor_b32 v31, 4, v31")
    A(f"v_lshl_add_u32 {v(vDA1)}, v31, 4, v30")
    A(f"v_add_u32 {v(vDA1)}, {8*896}, {v(vDA1)}")
    A(f"v_and_b32 v30, 31, {v(vLANE)}")
    A(f"s_lshl_b32 s{sT0}, s{sJ}, 6")
    A(f"s_lshl_b32 s{sT1}, s{sPW}, 5")
    A(f"s_add_u32 s{sT1}, s{sT1}, s{sT0}")
    A(f"v_add_lshl_u32 v30, v30, s{sT1}, 1")
    A(f"v_and_b32 v31, 15, {v(vLANE)}")
    A(f"s_lshl_b32 s{sT1}, s{sW}, 4")
    A(f"s_add_u32 s{sT1}, s{sT1}, s{sT0}")
    A(f"v_add_lshl_u32 v31, v31, s{sT1}, 1")
    A("s_waitcnt lgkmcnt(0)")
    if STAMPS:
        A("v_writelane_b32 v0, s94, 0")
    stamp(11)
    A("global_load_ushort v64, v30, s[18:19]")
    A("global_load_ushort v65, v30, s[20:21]")
    A("global_load_ushort v66, v30, s[30:31]")
    A(f"global_load_ushort {v(vD)}, v31, s[32:33]")
    srd(SX, 16, 1835008)
    srd(SBR, 22, 401408)
    srd(SBI, 24, 401408)

    def dma_stage(slot):
        A(f"s_add_u32 s{sT0}, s{sXO}, s{sKB}")
        A(f"s_add_u32 m0, s{sMW}, {slot*24576}")
        A(f"s_add_u32 s{sT1}, s{sBO}, s{sKB}")
        A(f"buffer_load_dwordx4 {v(vDA0)}, {s(SX,4)}, s{sT0} offen lds")
        A("s_add_u32 m0, m0, 1024")
        A(f"s_add_u32 s{sKB}, s{sKB}, 128")
        A(f"buffer_load_dwordx4 {v(vDA1)}, {s(SX,4)}, s{sT0} offen lds")
        A("s_add_u32 m0, m0, 7168")
        A(f"s_cmp_eq_u32 s{sKB}, 896")
        A(f"buffer_load_dwordx4 {v(vDA0)}, {s(SBR,4)}, s{sT1} offen lds")
        A(f"s_cselect_b32 s{sKB}, 0, s{sKB}")
        A("s_add_u32 m0, m0, 1024")
        A(f"buffer_load_dwordx4 {v(vDA1)}, {s(SBR,4)}, s{sT1} offen lds")
        A("s_add_u32 m0, m0, 7168")
        A(f"buffer_load_dwordx4 {v(vDA0)}, {s(SBI,4)}, s{sT1} offen lds")
        A("s_add_u32 m0, m0, 1024")
        A(f"buffer_load_dwordx4 {v(vDA1)}, {s(SBI,4)}, s{sT1} offen lds")

    for st in range(3):
        dma_stage(st)
    stamp(12)
    srd(52, 26, 401408)
    srd(56, 28, 401408)
    srd(SOUT, 34, 7340032)
    A(f"s_lshl_b32 s{sT0}, s{sJ}, 1")
    A(f"s_add_u32 s{sT0}, s{sT0}, s{sPW}")
    A(f"s_lshl_b32 s{sT0}, s{sT0}, 13")
    A(f"s_add_u32 s{sT0}, s{sT0}, {hex(WS_E)}")
    srd(SE, 38, 8192, off=f"s{sT0}")
    A(f"s_mul_i32 s{sT0}, s{sTT}, {7*16384}")
    A(f"s_add_u32 s{sT0}, s{sT0}, {hex(WS_H)}")
    srd(SH, 38, 7 * 16384, off=f"s{sT0}")
    A(f"v_and_b32 v30, 31, {v(vLANE)}")
    A(f"v_lshrrev_b32 v31, 5, {v(vLANE)}")
    A(f"v_bfe_u32 v67, v30, 2, 1")
    A(f"v_lshlrev_b32 v67, 4, v67")
    A(f"v_lshrrev_b32 v68, 3, v30")
    A(f"v_lshl_add_u32 v67, v68, 2, v67")
    A(f"v_and_b32 v68, 3, v30")
    A(f"v_add_u32 v67, v67, v68")
    A(f"s_lshl_b32 s{sT0}, s{sTW}, 5")
    A(f"v_add_u32 v67, s{sT0}, v67")
    A(f"v_bfe_u32 v68, v67, 1, 3")
    A(f"v_xor_b32 v68, v68, v31")
    A(f"v_lshlrev_b32 v68, 4, v68")
    A(f"v_lshl_add_u32 {v(vXA)}, v67, 7, v68")
    A(f"s_lshl_b32 s{sT0}, s{sPW}, 5")
    A(f"v_add_u32 v67, s{sT0}, v30")
    A(f"v_bfe_u32 v68, v67, 1, 3")
    A(f"v_xor_b32 v68, v68, v31")
    A(f"v_lshlrev_b32 v68, 4, v68")
    A(f"v_lshl_add_u32 {v(vBA)}, v67, 7, v68")
    A(f"v_add_u32 {v(vBA)}, 8192, {v(vBA)}")
    for k in range(1, 4):
        A(f"v_xor_b32 {v(vXA+k)}, {32*k}, {v(vXA)}")
        A(f"v_xor_b32 {v(vBA+k)}, {32*k}, {v(vBA)}")
    A(f"s_lshl_b32 s{sT0}, s{sTW}, 1")
    A(f"v_add_u32 v31, s{sT0}, v31")
    A(f"v_cvt_f32_u32 v69, v31")
    A("s_waitcnt vmcnt(18)")
    stamp(1)
    A("v_lshlrev_b32 v64, 16, v64")
    A("v_lshlrev_b32 v65, 16, v65")
    A("v_lshlrev_b32 v66, 16, v66")
    A(f"v_lshlrev_b32 {v(vD)}, 16, {v(vD)}")
    A(f"v_mul_f32 v66, {hex(LOG2E)}, v66")
    A("v_exp_f32 v66, v66")
    A("v_cvt_pk_bf16_f32 v66, v66, v66")
    A("v_lshlrev_b32 v66, 16, v66")
    A("v_mul_f32 v70, v66, v64")
    A("v_mul_f32 v71, v66, v65")
    A(f"v_mul_f32 v70, {hex(LOG2E)}, v70")
    A(f"v_mul_f32 v71, {INV2PI}, v71")
    cexp(vLAM, 70, 71, None, 72)
    A("v_mul_f32 v74, 0x41800000, v69")
    A("v_mul_f32 v75, 0x42800000, v69")
    cexp(vL16, 70, 71, "0x41800000", 72)
    cexp(vLS, 70, 71, "v74", 72)
    cexp(vW, 70, 71, "v75", 72)
    cexp(vMU, 70, 71, "0x43800000", 72)
    A(f"v_sub_f32 {v(vNLI)}, 0, {v(vLAM+1)}")
    A(f"v_add_f32 v72, -1.0, {v(vLAM)}")
    A("v_mul_f32 v73, v64, v64")
    A("v_fmac_f32 v73, v65, v65")
    A("v_rcp_f32 v73, v73")
    A("v_mul_f32 v74, v72, v64")
    A(f"v_fmac_f32 v74, {v(vLAM+1)}, v65")
    A(f"v_mul_f32 v75, {v(vLAM+1)}, v64")
    A("v_fma_f32 v75, -v72, v65, v75")
    A("v_add_f32 v73, v73, v73")
    A(f"v_mul_f32 {v(vGAM)}, v74, v73")
    A(f"v_mul_f32 {v(vGAM+1)}, v75, v73")
    for i in range(16):
        pr, pi = (vGAM, vGAM + 1) if i == 0 else (PR + i - 1, PI + i - 1)
        A(f"v_mul_f32 {v(PR+i)}, {v(vLAM)}, {v(pr)}")
        A(f"v_mul_f32 {v(PI+i)}, {v(vLAM)}, {v(pi)}")
        A(f"v_fmac_f32 {v(PR+i)}, {v(vNLI)}, {v(pi)}")
        A(f"v_fmac_f32 {v(PI+i)}, {v(vLAM+1)}, {v(pr)}")
    stamp(2)

    def c_round_issue(blocks, base, wstride):
        A(f"s_mul_i32 s{sT1}, s{sW}, {wstride}")
        A(f"s_add_u32 m0, s{sT1}, {base}")
        for n, b in enumerate(blocks):
            q, comp = b // 2, b % 2
            if comp == 0:
                if q == 0:
                    A(f"s_lshl_b32 s{sJQ}, s{sJ}, 7")
                else:
                    A(f"s_add_u32 s{sJQ}, s{sJQ}, 128")
                    A(f"s_cmp_eq_u32 s{sJQ}, 896")
                    A(f"s_cselect_b32 s{sJQ}, 0, s{sJQ}")
            A(f"s_add_u32 s{sT0}, s{sBO}, s{sJQ}")
            sr = 52 if comp == 0 else 56
            A(f"buffer_load_dwordx4 {v(vDA0)}, {s(sr,4)}, s{sT0} offen lds")
            A("s_add_u32 m0, m0, 1024")
            A(f"buffer_load_dwordx4 {v(vDA1)}, {s(sr,4)}, s{sT0} offen lds")
            if n != len(blocks) - 1:
                A("s_add_u32 m0, m0, 1024")

    def c_round_read(blocks, base, va0, va1):
        for n, b in enumerate(blocks):
            q, comp = b // 2, b % 2
            f = 4 * q + 2 * comp
            A(f"ds_read_b128 {v(CREG+4*f,4)}, {v(va0)} offset:{base+n*2048}")
            A(f"ds_read_b128 {v(CREG+4*f+4,4)}, {v(va1)} offset:{base+n*2048}")

    for st in range(7):
        slot = st % 3
        A(f"s_waitcnt vmcnt({12 if st == 0 else 7 if st == 6 else 6})")
        A("s_barrier")
        if st == 0:
            stamp(3)
        else:
            stamp(16 + st)
        if 1 <= st <= 4:
            dma_stage((st + 2) % 3)
        if st == 5:
            A(f"global_load_dword {v(vEP)}, {v(vZ)}, s[36:37] sc1")
            c_round_issue([0, 1, 2], 24576, 6144)
        if st == 6:
            c_round_issue([3, 4, 5], 49152, 6144)
        for k in range(4):
            A(f"ds_read_b128 {v(FR+12*k,4)}, {v(vXA+k)} offset:{slot*24576}")
            A(f"ds_read_b128 {v(FR+12*k+4,4)}, {v(vBA+k)} offset:{slot*24576}")
            A(f"ds_read_b128 {v(FR+12*k+8,4)}, {v(vBA+k)} offset:{slot*24576+8192}")
        for k in range(4):
            A(f"s_waitcnt lgkmcnt({9-3*k})")
            c0 = "0" if (st == 0 and k == 0) else v(ACR, 16)
            c1 = "0" if (st == 0 and k == 0) else v(ACI, 16)
            A(f"v_mfma_f32_32x32x16_bf16 {v(ACR,16)}, {v(FR+12*k,4)}, {v(FR+12*k+4,4)}, {c0}")
            A(f"v_mfma_f32_32x32x16_bf16 {v(ACI,16)}, {v(FR+12*k,4)}, {v(FR+12*k+8,4)}, {c1}")
    stamp(4)
    vEXA, vCA0, vCA1, vCB0, vCB1, vLBA, vNV, vSCW, vSCR, vHA, vXO, vOO = 4, 5, 6, 7, 8, 9, 10, 11, 100, 101, 102, 103
    A(f"v_and_b32 v64, 31, {v(vLANE)}")
    A(f"v_lshrrev_b32 v65, 5, {v(vLANE)}")
    A(f"s_lshl_b32 s{sT0}, s{sTW}, 1")
    A(f"v_add_u32 v66, s{sT0}, v65")
    A(f"s_lshl_b32 s{sT1}, s{sPW}, 10")
    A(f"s_add_u32 s{sT1}, s{sT1}, {XOFF}")
    A(f"v_lshl_add_u32 {v(vEXA)}, v64, 5, s{sT1}")
    A(f"v_lshl_add_u32 v67, v66, 3, {v(vEXA)}")
    A(f"s_sub_u32 s{sT0}, 32, s{sTT}")
    A(f"v_add_u32 v68, s{sT0}, v66")
    A(f"v_lshlrev_b32 v68, 8, v68")
    A(f"v_lshl_add_u32 {v(vLBA)}, v64, 3, v68")
    A(f"s_add_u32 s{sT0}, s{sTT}, 3")
    A(f"v_sub_u32 {v(vNV)}, s{sT0}, v66")
    A(f"v_lshrrev_b32 {v(vNV)}, 2, {v(vNV)}")
    A(f"s_mul_i32 s{sT0}, s{sW}, 5120")
    A(f"s_add_u32 s{sT0}, s{sT0}, {SCR}")
    A(f"v_mul_u32_u24 v68, 1280, v65")
    A(f"v_lshl_add_u32 v68, v64, 1, v68")
    A(f"v_add_u32 {v(vSCW)}, s{sT0}, v68")
    for t in range(1, 16):
        A(f"v_fmac_f32 {v(ACR+t)}, {v(vLAM)}, {v(ACR+t-1)}")
        A(f"v_fmac_f32 {v(ACI+t)}, {v(vLAM)}, {v(ACI+t-1)}")
        A(f"v_fmac_f32 {v(ACR+t)}, {v(vNLI)}, {v(ACI+t-1)}")
        A(f"v_fmac_f32 {v(ACI+t)}, {v(vLAM+1)}, {v(ACR+t-1)}")
    stamp(13)
    A(f"ds_write2_b32 v67, {v(ACR+15)}, {v(ACI+15)} offset0:0 offset1:1")
    A("s_waitcnt lgkmcnt(0)")
    A("s_barrier")
    A(f"ds_read_b128 v[68:71], {v(vEXA)}")
    A(f"ds_read_b128 v[72:75], {v(vEXA)} offset:16")
    c_round_issue([6, 7, 8], 0, 6144)
    A(f"s_sub_u32 s{sT0}, 31, s{sTT}")
    A(f"s_lshl_b32 s{sT0}, s{sT0}, 8")
    A(f"v_lshl_add_u32 v84, v64, 3, s{sT0}")
    A("s_waitcnt lgkmcnt(0)")
    cfma(76, vL16, 68, 70)
    cfma(78, vL16, 76, 72)
    cfma(80, vL16, 78, 74)
    poll_epoch(vEP, vZ, 36, sEP, "B_ep", 18)
    A("v_cvt_pk_bf16_f32 v82, v80, v81")
    A(f"v_mov_b32 v83, s{sEP}")
    A(f"s_lshl_b32 s{sT0}, s{sTW}, 4")
    A(f"s_lshl_b32 s{sT0}, 0xffff, s{sT0}")
    A(f"s_mov_b32 exec_lo, s{sT0}")
    A("s_mov_b32 exec_hi, 0")
    A(f"buffer_store_dwordx2 v[82:83], v84, {s(SE,4)}, 0 offen sc1")
    A("s_mov_b64 exec, -1")
    stamp(5)
    A(f"s_cmp_eq_u32 s{sTW}, 0")
    A("s_cbranch_scc1 B_tw0")
    A(f"v_cndmask_b32 {v(vT)}, v76, v78, s[{sHI}:{sHI+1}]")
    A(f"v_cndmask_b32 {v(vT+1)}, v77, v79, s[{sHI}:{sHI+1}]")
    A("s_branch B_tw1")
    A.label("B_tw0")
    A(f"v_cndmask_b32 {v(vT)}, 0, v68, s[{sHI}:{sHI+1}]")
    A(f"v_cndmask_b32 {v(vT+1)}, 0, v69, s[{sHI}:{sHI+1}]")
    A.label("B_tw1")
    XS = 84
    A(f"v_and_b32 v68, 15, {v(vLANE)}")
    A(f"v_lshrrev_b32 v69, 4, {v(vLANE)}")
    A(f"v_mul_u32_u24 {v(vXO)}, {4*896}, v69")
    A(f"v_lshl_add_u32 {v(vXO)}, v68, 1, {v(vXO)}")
    A(f"v_mul_u32_u24 {v(vOO)}, {4*3584}, v69")
    A(f"v_lshl_add_u32 {v(vOO)}, v68, 2, {v(vOO)}")
    A(f"s_lshl_b32 s{sT0}, s{sJ}, 7")
    A(f"s_lshl_b32 s{sT1}, s{sW}, 5")
    A(f"s_add_u32 s{sT0}, s{sT0}, s{sT1}")
    A(f"s_add_u32 s{sT0}, s{sT0}, s{sXO}")
    for i in range(16):
        A(f"v_mov_b32 {v(XS+i)}, 0")
    for rt in range(4):
        for r in range(4):
            A(f"buffer_load_short_d16_hi {v(XS+4*rt+r)}, {v(vXO)}, {s(SX,4)}, s{sT0} offen offset:{r*896}")
        if rt < 3:
            A(f"s_add_u32 s{sT0}, s{sT0}, {16*896}")
    A(f"v_bfe_u32 v70, v68, 1, 3")
    A(f"v_xor_b32 v70, v70, v69")
    A(f"v_lshlrev_b32 v70, 4, v70")
    A(f"v_lshl_add_u32 v70, v68, 7, v70")
    A(f"s_mul_i32 s{sT0}, s{sW}, 6144")
    A(f"v_add_u32 {v(vCA0)}, s{sT0}, v70")
    A(f"v_xor_b32 {v(vCA1)}, 64, {v(vCA0)}")
    A(f"s_lshl_b32 s{sT0}, s{sW}, 12")
    A(f"v_add_u32 {v(vCB0)}, s{sT0}, v70")
    A(f"v_xor_b32 {v(vCB1)}, 64, {v(vCB0)}")
    A(f"s_mul_i32 s{sT0}, s{sW}, 5120")
    A(f"s_add_u32 s{sT0}, s{sT0}, {SCR}")
    A(f"v_mul_u32_u24 v70, 80, v68")
    A(f"v_lshl_add_u32 v70, v69, 4, v70")
    A(f"v_add_u32 {v(vSCR)}, s{sT0}, v70")
    A(f"v_lshlrev_b32 {v(vHA)}, 4, {v(vLANE)}")
    A(f"v_mov_b32 v108, {v(vGAM+1)}")
    for t in range(0, 16, 2):
        tm = 104 + (t & 2)
        A(f"v_pk_mul_f32 {v(tm,2)}, {v(ACR+t,2)}, v[108:109] op_sel_hi:[1,0]")
        A(f"v_pk_mul_f32 {v(ACR+t,2)}, {v(ACR+t,2)}, {v(vGAM,2)} op_sel_hi:[1,0]")
        A(f"v_pk_fma_f32 {v(ACR+t,2)}, {v(ACI+t,2)}, v[108:109], {v(ACR+t,2)} op_sel_hi:[1,0,1] neg_lo:[1,0,0] neg_hi:[1,0,0]")
        A(f"v_pk_fma_f32 {v(ACI+t,2)}, {v(ACI+t,2)}, {v(vGAM,2)}, {v(tm,2)} op_sel_hi:[1,0,1]")
    A("s_waitcnt vmcnt(29)")
    c_round_read([0, 1, 2], 24576, vCA0, vCA1)
    A("s_waitcnt vmcnt(23)")
    c_round_read([3, 4, 5], 49152, vCA0, vCA1)
    LB = 64
    A(f"s_movk_i32 s{sT1}, 4096")

    def lb_issue():
        for i in range(8):
            so = "0" if i < 4 else f"s{sT1}"
            A(f"buffer_load_dwordx2 {v(LB+2*i,2)}, {v(vLBA)}, {s(SE,4)}, {so} offen offset:{(i%4)*1024} sc1")
    lb_issue()
    A("s_waitcnt vmcnt(25)")
    A("s_waitcnt lgkmcnt(4)")
    c_round_read([6, 7, 8], 0, vCA0, vCA1)
    A("s_waitcnt vmcnt(8)")
    for i in range(16):
        A(f"v_mul_f32 {v(XS+i)}, {v(XS+i)}, {v(vD)}")
    A(f"v_mul_lo_u32 {v(vNV)}, {v(vNV)}, s{sEP}")
    stamp(14)
    A.label("B_lb")
    A("s_waitcnt vmcnt(0)")
    A(f"v_add3_u32 v80, {v(LB+1)}, {v(LB+3)}, {v(LB+5)}")
    A(f"v_add3_u32 v81, {v(LB+7)}, {v(LB+9)}, {v(LB+11)}")
    A(f"v_add3_u32 v80, v80, {v(LB+13)}, {v(LB+15)}")
    A(f"v_add_u32 v80, v80, v81")
    A(f"v_cmp_eq_u32 vcc, v80, {v(vNV)}")
    A("s_cmp_eq_u64 vcc, -1")
    A("s_cbranch_scc1 B_lb_ok")
    spin_guard()
    lb_issue()
    A("s_branch B_lb")
    A.label("B_lb_ok")
    stamp(6)
    for i in range(8):
        A(f"v_and_b32 {v(LB+2*i+1)}, 0xffff0000, {v(LB+2*i)}")
        A(f"v_lshlrev_b32 {v(LB+2*i)}, 16, {v(LB+2*i)}")
    for i in range(6, -1, -1):
        cfma(LB + 2 * i, vMU, LB + 2 * i + 2, LB + 2 * i)
    cmul(80, vW, LB)
    A(f"v_lshrrev_b32 v65, 5, {v(vLANE)}")
    A(f"s_lshl_b32 s{sT0}, s{sTW}, 1")
    A(f"v_add_u32 v66, s{sT0}, v65")
    A(f"v_lshl_add_u32 v67, v66, 3, {v(vEXA)}")
    A(f"ds_write_b64 v67, v[80:81] offset:2048")
    A("s_waitcnt lgkmcnt(0)")
    A("s_barrier")
    A(f"ds_read_b128 v[68:71], {v(vEXA)} offset:2048")
    A(f"ds_read_b128 v[72:75], {v(vEXA)} offset:2064")
    A("s_waitcnt lgkmcnt(0)")
    A("v_pk_add_f32 v[68:69], v[68:69], v[70:71]")
    A("v_pk_add_f32 v[72:73], v[72:73], v[74:75]")
    A("v_pk_add_f32 v[68:69], v[68:69], v[72:73]")
    cfma(vT, vLS, 68, vT)
    A(f"v_mov_b32 v108, {v(vT+1)}")
    for t in range(0, 16, 2):
        A(f"v_pk_fma_f32 {v(ACR+t,2)}, {v(PR+t,2)}, {v(vT,2)}, {v(ACR+t,2)} op_sel_hi:[1,0,1]")
        A(f"v_pk_fma_f32 {v(ACI+t,2)}, {v(PR+t,2)}, v[108:109], {v(ACI+t,2)} op_sel_hi:[1,0,1]")
        A(f"v_pk_fma_f32 {v(ACR+t,2)}, {v(PI+t,2)}, v[108:109], {v(ACR+t,2)} op_sel_hi:[1,0,1] neg_lo:[1,0,0] neg_hi:[1,0,0]")
        A(f"v_pk_fma_f32 {v(ACI+t,2)}, {v(PI+t,2)}, {v(vT,2)}, {v(ACI+t,2)} op_sel_hi:[1,0,1]")
        A(f"v_cvt_pk_bf16_f32 {v(64+t)}, {v(ACR+t)}, {v(ACR+t+1)}")
        A(f"v_cvt_pk_bf16_f32 {v(65+t)}, -{v(ACI+t)}, -{v(ACI+t+1)}")
        A(f"ds_write_b16 {v(vSCW)}, {v(64+t)} offset:{t*80}")
        A(f"ds_write_b16_d16_hi {v(vSCW)}, {v(64+t)} offset:{(t+1)*80}")
        A(f"ds_write_b16 {v(vSCW)}, {v(65+t)} offset:{2560+t*80}")
        A(f"ds_write_b16_d16_hi {v(vSCW)}, {v(65+t)} offset:{2560+(t+1)*80}")
    A("s_waitcnt lgkmcnt(0)")
    for comp in range(2):
        for rt in range(2):
            A(f"ds_read_b128 {v(32+8*comp+4*rt,4)}, {v(vSCR)} offset:{comp*2560+rt*1280}")
    stamp(15)
    A(f"s_lshl_b32 s{sT0}, s{sJ}, 14")
    A(f"s_lshl_b32 s{sT1}, s{sPW}, 12")
    A(f"s_add_u32 s{sT0}, s{sT0}, s{sT1}")
    A(f"s_lshl_b32 s{sT1}, s{sTW}, 11")
    A(f"s_add_u32 s{sT0}, s{sT0}, s{sT1}")
    A(f"s_add_u32 s{sT1}, s{sT0}, 8192")
    for comp in range(2):
        for rt in range(2):
            n = 2 * comp + rt
            A(f"s_waitcnt lgkmcnt({3-n})")
            A(f"buffer_store_dwordx4 {v(32+8*comp+4*rt,4)}, {v(vHA)}, {s(SH,4)}, s{sT0 if comp == 0 else sT1} offen offset:{rt*1024} sc1")
    A("s_waitcnt vmcnt(0)")
    A("s_barrier")
    stamp(7)
    A(f"s_lshl_b32 s{sT0}, s{sTT}, 7")
    A(f"s_add_u32 s{sT0}, s{sT0}, {hex(WS_FLAGH)}")
    A(f"v_lshl_add_u32 v64, {v(vLANE)}, 2, s{sT0}")
    A(f"s_cmp_lg_u32 s{sW}, 0")
    A("s_cbranch_scc1 B_noflag")
    A(f"s_lshl_b32 s{sT1}, 1, s{sJ}")
    A(f"s_mov_b32 exec_lo, s{sT1}")
    A("s_mov_b32 exec_hi, 0")
    A(f"v_mov_b32 v65, s{sEP}")
    A("global_store_dword v64, v65, s[38:39] sc1")
    A("s_mov_b64 exec, -1")
    A.label("B_noflag")
    c_round_issue([9, 10, 11], 0, 6144)
    c_round_issue([12, 13], 24576, 4096)
    A("s_mov_b64 exec, 0x7f")
    A.label("B_hp")
    spin_guard()
    A("global_load_dword v65, v64, s[38:39] sc1")
    A("s_waitcnt vmcnt(0)")
    A(f"v_cmp_eq_u32 vcc, s{sEP}, v65")
    A("s_cmp_eq_u64 vcc, exec")
    A("s_cbranch_scc0 B_hp")
    A("s_mov_b64 exec, -1")
    stamp(8)
    A(f"s_lshl_b32 s{sJQ}, s{sJ}, 14")
    A(f"s_lshl_b32 s{sMW}, s{sW}, 12")

    def h_issue(q):
        A(f"s_add_u32 m0, s{sMW}, {HSLOT[q % 4]}")
        A(f"s_add_u32 s{sT0}, s{sJQ}, s{sMW}")
        for i in range(4):
            A(f"buffer_load_dwordx4 {v(vHA)}, {s(SH,4)}, s{sT0} offen offset:{i*1024} sc1 lds")
        A(f"s_add_u32 s{sJQ}, s{sJQ}, 16384")
        A(f"s_cmp_eq_u32 s{sJQ}, {7*16384}")
        A(f"s_cselect_b32 s{sJQ}, 0, s{sJQ}")
    h_issue(0)
    h_issue(1)
    A(f"v_add_u32 v136, 40960, {v(vHA)}")
    c_round_read([9, 10, 11], 0, vCA0, vCA1)
    c_round_read([12, 13], 24576, vCB0, vCB1)
    AC2 = XS
    HF = 32
    hf = [32 + 4 * i for i in range(8)] + [104 + 4 * i for i in range(8)]
    waits = [4, 8, 8, 8, 8, 4, 0]
    for q in range(7):
        A(f"s_waitcnt vmcnt({waits[q]}) lgkmcnt(0)")
        A("s_barrier")
        if q == 0:
            stamp(9)
            h_issue(2)
            h_issue(3)
        else:
            stamp(23 + q)
        if 1 <= q <= 3:
            h_issue(q + 3)
        base = HSLOT[q % 4]

        def rd(kk):
            for rt in range(4):
                if base >= 40960:
                    A(f"ds_read_b128 {v(hf[4*kk+rt],4)}, v136 offset:{base-40960+(4*kk+rt)*1024}")
                else:
                    A(f"ds_read_b128 {v(hf[4*kk+rt],4)}, {v(vHA)} offset:{base+(4*kk+rt)*1024}")

        def mm(kk):
            for rt in range(4):
                A(f"v_mfma_f32_16x16x32_bf16 {v(AC2+4*rt,4)}, {v(hf[4*kk+rt],4)}, {v(CREG+4*(4*q+kk),4)}, {v(AC2+4*rt,4)}")
        rd(0); rd(1); rd(2)
        A("s_waitcnt lgkmcnt(8)")
        mm(0)
        rd(3)
        A("s_waitcnt lgkmcnt(8)")
        mm(1)
        A("s_waitcnt lgkmcnt(4)")
        mm(2)
        A("s_waitcnt lgkmcnt(0)")
        mm(3)
    stamp(10)
    A(f"s_mul_i32 s{sT0}, s{sTT}, {64*3584}")
    A(f"s_lshl_b32 s{sT1}, s{sJ}, 8")
    A(f"s_add_u32 s{sT0}, s{sT0}, s{sT1}")
    A(f"s_lshl_b32 s{sT1}, s{sW}, 6")
    A(f"s_add_u32 s{sT0}, s{sT0}, s{sT1}")
    A(f"s_add_u32 s{sT0}, s{sT0}, 1792")
    for rt in range(4):
        for r in range(0, 4, 2):
            A(f"buffer_store_dword {v(AC2+4*rt+r)}, {v(vOO)}, {s(SOUT,4)}, s{sT0} offen")
            A(f"buffer_store_dword {v(AC2+4*rt+r+1)}, {v(vOO)}, {s(SOUT,4)}, s{sT0} offen offset:3584")
            A(f"s_add_u32 s{sT0}, s{sT0}, {2*3584 if r == 0 else 14*3584}")
    stamps_flush(38, "B_st")
    A("s_endpgm")

    A.label("B_idle")
    A("s_cmp_lg_u32 s4, 28")
    A("s_cbranch_scc1 L_exit")
    A("v_cmp_eq_u32 vcc, 0, v0")
    A("s_and_saveexec_b64 s[4:5], vcc")
    A("s_cbranch_execz L_exit")
    A("s_waitcnt lgkmcnt(0)")
    A("v_mov_b32 v1, 0")
    A("global_load_dword v2, v1, s[38:39] sc1")
    A("v_mov_b32 v3, 0")
    A("s_waitcnt vmcnt(0)")
    A("v_add_u32 v2, 1, v2")
    A("v_max_u32 v2, 1, v2")
    A("global_atomic_cmpswap v4, v1, v[2:3], s[36:37] sc0 sc1")
    A("s_waitcnt vmcnt(0)")
    A("v_cmp_eq_u32 vcc, 0, v4")
    A("s_and_saveexec_b64 s[4:5], vcc")
    A("s_cbranch_execz L_exit")
    A("global_store_dword v1, v2, s[38:39] sc1")
    A("s_endpgm")


def main():
    hdr = open("cdna_kernels/" + NAME + ".s.ref").read().split("\n")
    top = [l for l in hdr if l.startswith(";") and "@launch" not in l]
    out = top + ["; @launch grid=(512,1,1) block=(256,1,1) lds=81920"]
    out += ['.amdgcn_target "amdgcn-amd-amdhsa--gfx950"', ".text", f".globl {NAME}_kernel", ".p2align 8",
            f".type {NAME}_kernel,@function", f"{NAME}_kernel:"]
    A(f"s_mov_b32 s{SPIN}, 0x40000")
    A("s_cmp_ge_u32 s2, 512")
    A("s_cbranch_scc1 L_exit")
    A("s_cmp_ge_u32 s2, 256")
    A("s_cbranch_scc1 A_entry")
    gen_B()
    import gen_a
    gen_a.gen_A(A, globals())
    A.label("L_exit")
    A("s_endpgm")
    out += hazard_pass(A.lines)
    out += ['.section .rodata,"a"', ".p2align 6", f".amdhsa_kernel {NAME}_kernel",
            "  .amdhsa_next_free_vgpr 256", "  .amdhsa_next_free_sgpr 102", "  .amdhsa_accum_offset 256",
            "  .amdhsa_group_segment_fixed_size 0", "  .amdhsa_kernarg_size 152", "  .amdhsa_user_sgpr_count 2",
            "  .amdhsa_user_sgpr_kernarg_segment_ptr 1", "  .amdhsa_system_sgpr_workgroup_id_x 1",
            ".end_amdhsa_kernel", ""]
    dst = [a for a in sys.argv[1:] if not a.startswith("--")]
    open(dst[0] if dst else "k.s", "w").write("\n".join(out))


if __name__ == "__main__":
    main()
```
